```python
import torch

def _softmax(x, axis=-1):
    return torch.softmax(x, dim=axis)
def _gelu(x):
    return torch.nn.functional.gelu(x, approximate="tanh")
def _silu(x):
    return torch.nn.functional.silu(x)
def _sigmoid(x):
    return torch.sigmoid(x)
def _layernorm(x, axis=-1, eps=1e-5):
    m = x.mean(dim=axis, keepdim=True)
    v = x.var(dim=axis, keepdim=True, unbiased=False)
    return (x - m) / torch.sqrt(v + eps)
def _scatter_add(tgt, idx, src, axis=0):
    return tgt.clone().index_add_(axis, idx, src)
def _segment_sum(src, seg, n):
    out = torch.zeros((n,) + src.shape[1:], dtype=src.dtype)
    return out.index_add_(0, seg, src)
def _pad(x, pw):
    flat = tuple(v for pair in reversed(pw) for v in pair)
    return torch.nn.functional.pad(x, flat)

kernel_name = 'recurrent_scan__sliding_block_cached__swiglu_ffn__prompt'

def setup_inputs():

    _w = (lambda a: (lambda t: t.to(torch.bfloat16) if t.is_floating_point() else t)(torch.as_tensor(a)))
    def _A_setup():
        B, Sq, D = 1, 2048, 640
        Hq, Hkv, Sk, Dh = 32, 32, 2048, 128
        assert Hq % Hkv == 0, (Hq, Hkv)
        return {
            "x": _w((lambda *s: torch.randn(*s, dtype=torch.bfloat16) * 0.05)(B, Sq, D)),
            "k_cache": _w((lambda *s: torch.randn(*s, dtype=torch.bfloat16) * 0.8)(B, Hkv, Sk, Dh)),
            "v_cache": _w((lambda *s: torch.randn(*s, dtype=torch.bfloat16) * 0.2)(B, Hkv, Sk, Dh)),
            "wq": _w((lambda *s: torch.randn(*s, dtype=torch.bfloat16) * 0.8)(D, Hq * Dh) * (D ** -0.5)),
            "wo": _w((lambda *s: torch.randn(*s, dtype=torch.bfloat16) * 0.2)(Hq * Dh, D) * ((Hq * Dh) ** -0.5)),
        }
    _A_in = _A_setup()

    def _B_setup():
        B, S, D, F = 1, 2048, 640, 1728
        return {
            "x": _w((lambda *s: torch.randn(*s, dtype=torch.bfloat16) * 0.05)(B, S, D)),
            "w_gate": _w((lambda *s: torch.randn(*s, dtype=torch.bfloat16) * 0.1)(D, F)),
            "w_up": _w((lambda *s: torch.randn(*s, dtype=torch.bfloat16) * 0.1)(D, F)),
            "w_down": _w((lambda *s: torch.randn(*s, dtype=torch.bfloat16) * 0.1)(F, D)),
        }
    _B_in = _B_setup()

    return {
        "A_x": _A_in["x"],
        "A_k_cache": _A_in["k_cache"],
        "A_v_cache": _A_in["v_cache"],
        "A_wq": _A_in["wq"],
        "A_wo": _A_in["wo"],
        "B_x": _B_in["x"],
        "B_w_gate": _B_in["w_gate"],
        "B_w_up": _B_in["w_up"],
        "B_w_down": _B_in["w_down"],
    }

def reference(A_x, A_k_cache, A_v_cache, A_wq, A_wo, B_x, B_w_gate, B_w_up, B_w_down):
    def _A_ref(x, k_cache, v_cache, wq, wo):
        B, Sq, D = x.shape
        Hq, Dh = 32, 128
        Hkv, Sk = k_cache.shape[1], k_cache.shape[2]
        W = min(4096, max(256, Sk // 4))
        rep = Hq // Hkv
        q = (lambda x, *d: x.permute(*d))((x @ wq).reshape(B, Sq, Hq, Dh), 0, 2, 1, 3)
        k = (lambda x, n, axis: torch.repeat_interleave(x, n, dim=axis))(k_cache[:, :, Sk - W:, :], rep, axis=1)
        v = (lambda x, n, axis: torch.repeat_interleave(x, n, dim=axis))(v_cache[:, :, Sk - W:, :], rep, axis=1)
        scores = torch.einsum("bhqd,bhkd->bhqk", q, k) * (Dh ** -0.5)
        p = _softmax(scores, axis=-1)
        o = torch.einsum("bhqk,bhkd->bhqd", p, v)
        return (lambda x, *d: x.permute(*d))(o, 0, 2, 1, 3).reshape(B, Sq, Hq * Dh) @ wo

    def _B_ref(x, w_gate, w_up, w_down):
        g = _silu(x @ w_gate)
        u = x @ w_up
        return (g * u) @ w_down

    x = A_x
    xn = _layernorm(x, axis=-1)
    s = _A_ref(xn, A_k_cache, A_v_cache, A_wq, A_wo)
    g = _silu(_B_ref(xn, B_w_gate, B_w_up, B_w_down))
    return x + s * g
```

```python
import re, copy

TRANS = ("v_exp_f32", "v_log_f32", "v_rcp_f32", "v_rsq_f32", "v_sqrt_f32", "v_sin_f32", "v_cos_f32")
REG_RE = re.compile(r"^(-|\|)?([vas])(\d+)\|?$")
RNG_RE = re.compile(r"^(-|\|)?([vas])\[(\d+):(\d+)\]\|?$")

def regs_of(op):
    op = op.strip()
    m = REG_RE.match(op)
    if m: return [(m.group(2), int(m.group(3)))]
    m = RNG_RE.match(op)
    if m: return [(m.group(2), i) for i in range(int(m.group(3)), int(m.group(4)) + 1)]
    if op in ("vcc", "vcc_lo", "vcc_hi"): return [("vcc", 0)]
    if op == "m0": return [("m0", 0)]
    if op in ("exec", "exec_lo", "exec_hi"): return [("exec", 0)]
    return []

class I:
    __slots__ = ("text", "mn", "rd", "wr", "kind", "tag", "srcc", "passes", "extra")
    def __init__(self, text, tag=None):
        self.text = text.strip(); self.tag = tag; self.srcc = []; self.passes = 0; self.extra = None
        t = self.text
        if t.endswith(":") or t.startswith(".") or t.startswith(";"):
            self.mn = ""; self.rd = []; self.wr = []; self.kind = "label" if t.endswith(":") else "dir"; return
        parts = t.split(None, 1)
        mn = self.mn = parts[0]
        ops = []
        if len(parts) > 1:
            for o in parts[1].split(","):
                o = o.strip().split()
                if o: ops.append(o[0])
        R = [regs_of(o) for o in ops]
        flat = lambda L: [x for l in L for x in l]
        base = re.sub(r"_(e32|e64|sdwa|dpp)$", "", mn)
        has_lds = bool(re.search(r"\blds\b", t))
        if mn.startswith("v_mfma"):
            self.kind = "mfma"; self.wr = R[0]; self.rd = flat(R[1:]); self.srcc = R[3]
            self.passes = 8 if "32x32" in mn else 4
            self.extra = flat(R[1:3])
        elif mn.startswith(("buffer_load", "global_load")):
            if has_lds or "_lds_" in mn:
                self.kind = "dma"; self.wr = []; self.rd = flat(R) + [("m0", 0)]
            else:
                self.kind = "vload"; self.wr = R[0]; self.rd = flat(R[1:])
        elif mn.startswith(("buffer_store", "global_store")):
            self.kind = "vstore"; self.wr = []; self.rd = flat(R)
            self.extra = (R[0] if mn.startswith("buffer") else R[1]) if re.search(r"x[34]$", mn) else []
        elif mn.startswith(("buffer_atomic", "global_atomic")):
            self.kind = "vstore"; self.wr = []; self.rd = flat(R); self.extra = []
            if re.search(r"\bsc0\b", t):
                self.kind = "vload"; self.wr = R[0]
        elif mn.startswith(("buffer_wbl2", "buffer_inv")):
            self.kind = "vstore"; self.wr = []; self.rd = []; self.extra = []
        elif mn.startswith(("ds_read", "ds_bpermute", "ds_permute", "ds_swizzle")):
            self.kind = "dsread"; self.wr = R[0]; self.rd = flat(R[1:])
        elif mn.startswith("ds_"):
            self.kind = "dswrite"; self.wr = []; self.rd = flat(R)
        elif mn.startswith(("s_load", "s_buffer_load", "s_memtime", "s_memrealtime")):
            self.kind = "smem"; self.wr = R[0]; self.rd = flat(R[1:])
        elif mn.startswith("v_"):
            self.kind = "trans" if base in TRANS else "valu"
            if base.startswith("v_permlane") and "swap" in base:
                self.wr = flat(R[:2]); self.rd = flat(R[:2]); self.kind = "perm"
            elif base.startswith("v_cmpx"):
                self.wr = [("exec", 0)]; self.rd = flat(R)
            elif base.startswith(("v_add_co", "v_sub_co", "v_addc_co", "v_subb_co")):
                self.wr = flat(R[:2]); self.rd = flat(R[2:])
            else:
                self.wr = R[0]; self.rd = flat(R[1:])
                if base.startswith(("v_fmac", "v_mac", "v_dot2c", "v_writelane")) or "dpp" in t or "row_" in t or "quad_perm" in t:
                    self.rd = self.rd + R[0]
                if base == "v_cndmask_b32" and len(ops) == 3: self.rd = self.rd + [("vcc", 0)]
            if "row_" in t or "quad_perm" in t or "wave_" in t: self.extra = "dpp"
        elif mn in ("s_waitcnt", "s_nop", "s_barrier", "s_setprio", "s_sleep", "s_endpgm"):
            self.kind = mn[2:]; self.wr = []; self.rd = []
        elif mn.startswith(("s_branch", "s_cbranch", "s_setpc")):
            self.kind = "branch"; self.wr = []; self.rd = flat(R)
            if "vcc" in mn: self.rd = [("vcc", 0)]
        elif mn.startswith(("s_cmp", "s_bitcmp")):
            self.kind = "salu"; self.wr = []; self.rd = flat(R)
        elif mn.startswith("s_"):
            self.kind = "salu"; self.wr = R[0]; self.rd = flat(R[1:])
            if "saveexec" in mn: self.wr = self.wr + [("exec", 0)]
        else:
            raise ValueError("unknown instr " + t)

class Prog:
    def __init__(self):
        self.out = []
        self.lg = []
        self.vm = []
        self.hist = []
        self.nops = 0
        self.count = 0
    def state(self): return (copy.deepcopy(self.lg), copy.deepcopy(self.vm), list(self.hist))
    def set_state(self, s): self.lg, self.vm, self.hist = copy.deepcopy(s[0]), copy.deepcopy(s[1]), list(s[2])
    def raw(self, text): self.out.append(text)
    def label(self, name): self.out.append(name + ":")
    def _slot(self, ins, n=1):
        for _ in range(n): self.hist.append(ins)
        self.hist = self.hist[-24:]
    def _wait(self, vm=None, lg=None):
        parts = []
        if vm is not None:
            vm = min(vm, 63)
            if len(self.vm) > vm: parts.append(f"vmcnt({vm})"); self.vm = self.vm[len(self.vm) - vm:] if vm else []
        if lg is not None:
            lg = min(lg, 15)
            if len(self.lg) > lg: parts.append(f"lgkmcnt({lg})"); self.lg = self.lg[len(self.lg) - lg:] if lg else []
        if parts:
            self.out.append("  s_waitcnt " + " ".join(parts)); self._slot(None); self.count += 1
    def wait_vm_tag(self, tag):
        idx = [i for i, (t, _) in enumerate(self.vm) if t == tag]
        if idx: self._wait(vm=len(self.vm) - 1 - idx[-1])
    def wait_all(self, vm=True, lg=True):
        self._wait(vm=0 if vm else None, lg=0 if lg else None)
    def force_wait(self, text):
        self.out.append("  s_waitcnt " + text); self._slot(None)
        if "vmcnt(0)" in text: self.vm = []
        if "lgkmcnt(0)" in text: self.lg = []
    def nop(self, n):
        while n > 0:
            k = min(n, 16); self.out.append(f"  s_nop {k-1}"); self._slot(None, k); n -= k; self.nops += k; self.count += 1
    def _need(self, ins):
        rd, wr = set(ins.rd), set(ins.wr); touch = rd | wr
        need = 0
        H = self.hist
        isv = ins.kind in ("valu", "trans", "perm")
        ismem = ins.kind in ("vload", "vstore", "dma", "dsread", "dswrite")
        isvm = ins.kind in ("vload", "vstore", "dma")
        for d, p in enumerate(reversed(H)):
            if p is None: continue
            pw = set(p.wr)
            req = 0
            if p.kind == "mfma":
                big = 12 if p.passes == 8 else 8
                if ins.kind == "mfma":
                    if pw & set(ins.extra): req = max(req, big)
                    if pw & set(ins.srcc) and not (p.wr == ins.srcc and p.passes == ins.passes): req = max(req, big - 2)
                    if pw & wr and p.wr != ins.srcc: req = max(req, big)
                elif (isv or ismem) and (pw & touch): req = max(req, big)
                if isv and (set(p.srcc) & wr): req = max(req, 7 if p.passes == 8 else 3)
            elif p.kind in ("valu", "trans", "perm"):
                if ins.kind == "mfma" and (pw & rd): req = max(req, 2)
                if ins.kind == "mfma" and ("exec", 0) in pw: req = max(req, 4)
                if p.kind == "trans" and isv and ins.kind != "trans" and (pw & rd): req = max(req, 1)
                if p.kind == "trans" and ins.kind == "trans" and (pw & rd): req = max(req, 1)
                if ins.kind == "perm" and (pw & rd): req = max(req, 2)
                if ins.extra == "dpp" and (pw & rd): req = max(req, 2)
                if ins.mn.startswith(("v_readfirstlane", "v_readlane")) and (pw & rd): req = max(req, 1)
                sw = {x for x in pw if x[0] in ("s", "vcc")}
                if sw & rd:
                    if isv: req = max(req, 4 if ins.mn.startswith(("v_readlane", "v_writelane", "v_div_fmas")) else 2)
                    if isvm: req = max(req, 5)
                    if ins.kind in ("salu", "branch", "smem"): req = max(req, 5 if ins.kind == "branch" else 2)
                if ("exec", 0) in pw and (ins.kind == "perm" or ins.extra == "dpp" or ins.mn.startswith("v_read")): req = max(req, 5)
                if "sdwa" in p.mn or "op_sel" in p.text:
                    if isv and (pw & touch): req = max(req, 1)
                if p.mn.startswith("v_dot") and (pw & touch) and (isv or ismem or ins.kind == "mfma"):
                    req = max(req, 3)
            elif p.kind == "salu":
                if ("m0", 0) in pw and ins.kind == "dma": req = max(req, 1)
            elif p.kind == "vstore":
                if p.extra and (set(p.extra) & wr): req = max(req, 2)
            if req > d: need = max(need, req - d)
        return need
    def E(self, text, tag=None):
        ins = I(text, tag)
        if ins.kind in ("label", "dir"):
            self.out.append(ins.text); return
        touch = set(ins.rd) | set(ins.wr)
        lgN = None; vmN = None
        for i, dst in enumerate(self.lg):
            if dst & touch: lgN = len(self.lg) - 1 - i
        for i, (t, dst) in enumerate(self.vm):
            if dst & touch: vmN = len(self.vm) - 1 - i
        if any(x == "smem" for d in self.lg for x in d) and lgN is not None: lgN = 0
        self._wait(vm=vmN, lg=lgN)
        n = self._need(ins)
        if n: self.nop(n)
        self.out.append("  " + ins.text); self._slot(ins); self.count += 1
        if ins.kind in ("dsread", "dswrite"): self.lg.append(set(ins.wr))
        elif ins.kind == "smem": self.lg.append(set(ins.wr) | {"smem"}); self.lg.append({"smem2"})
        elif ins.kind in ("vload", "vstore", "dma"): self.vm.append((tag, set(ins.wr)))
        if ins.kind == "waitcnt": raise ValueError("use force_wait")
    def text(self): return "\n".join(self.out) + "\n"

def weave(P, mf, fill):
    for m, f in zip(mf, fill):
        if m is not None: emit(P, m)
        for x in f: emit(P, x)

def emit(P, x):
    if callable(x): x()
    elif isinstance(x, tuple): P.E(x[0], x[1])
    else: P.E(x)

def spread(items, n, weights=None, start=0, end=None):
    end = n if end is None else end
    out = [[] for _ in range(n)]
    if not items: return out
    w = weights or [1] * len(items)
    tot = sum(w); acc = 0
    for it, wi in zip(items, w):
        g = start + min(end - start - 1, int((acc + wi / 2) * (end - start) / tot))
        out[g].append(it); acc += wi
    return out

def merge(*fills):
    n = len(fills[0])
    return [sum((f[i] for f in fills), []) for i in range(n)]
```

```python
from ir import *

NU = 182
WT_OFF = 32 << 20
LOG2E = 1.4426950408889634
import struct
def f2u(x): return struct.unpack("<I", struct.pack("<f", x))[0]

ACC = 0
XF = 128; A0 = 136; AW = 144; AX = 152; DX = 156; DW = 160
SX = 162; SXX = 163; CS = 164; T = 165
DK = 171; DV = 173; VST = 174; LANE = 175
AK = 176; AV = 184
NV = 188
NEGM = 128; PP = 144; LS = 162; LC = 163
AF = 0
QF = 32
NA = 64
sX, sW, sK, sV, sO, sH, sRS, sRD = 8, 12, 16, 20, 24, 28, 32, 36
sWV, sH_, sR_, sPITCH32, sWOFF, sXOFF, sMASK = 40, 41, 42, 43, 44, 45, 46
sM0W, sM0X, sM0K, sKOFF, sVOFF = 47, 48, 49, 50, 51
sHO = 52
sRO = 56
sOO = 60
sT = 64
sTHR = 4
KARG = 80

def vr(b, n): return f"v[{b}:{b+n-1}]"
def ar(b, n): return f"a[{b}:{b+n-1}]"
def sr(b, n=4): return f"s[{b}:{b+n-1}]"

LDS_X = 65536; LDS_SP = 131072

def prologue(P, cfg):
    E = P.E
    KA = 76
    E(f"s_load_dwordx16 s[{KA}:{KA+15}], s[0:1], 0")
    E(f"s_load_dwordx8 s[{KA+16}:{KA+23}], s[0:1], 64")
    pX, pK, pV, pWQ, pWO, pWG, pWU, pWD, pWS = KA, KA+2, KA+4, KA+6, KA+8, KA+12, KA+14, KA+16, KA+22
    E("s_cmp_ge_u32 s2, 256")
    E("s_cbranch_scc1 L_k1_end")
    E(f"v_lshrrev_b32 v1, 6, v0")
    E(f"v_and_b32 v{LANE}, 63, v0")
    E(f"v_readfirstlane_b32 s{sWV}, v1")
    E(f"s_and_b32 s{sT}, s2, 7"); E(f"s_lshl_b32 s{sT}, s{sT}, 2")
    E(f"s_bfe_u32 s{sT+1}, s2, 0x20003"); E(f"s_add_u32 s{sH_}, s{sT}, s{sT+1}")
    E(f"s_lshr_b32 s{sR_}, s2, 5")
    E(f"s_mov_b32 s{sMASK}, 0xffff0000")
    L = LANE
    E(f"v_lshrrev_b32 v1, 3, v{L}")
    E(f"v_mul_u32_u24 v2, 1280, v1")
    E(f"v_lshrrev_b32 v3, 4, v{L}")
    E(f"v_and_b32 v4, 7, v{L}")
    E(f"v_xor_b32 v5, v4, v3")
    E(f"v_lshl_add_u32 v{DX}, v5, 4, v2")
    E(f"v_xor_b32 v{DX+1}, 64, v{DX}")
    E(f"v_add_u32 v{DX+1}, {10240-1024}, v{DX+1}")
    E(f"v_add_u32 v{DX+2}, {2*(10240-1024)}, v{DX}")
    E(f"v_add_u32 v{DX+3}, {2*(10240-1024)}, v{DX+1}")
    w = sWV
    E(f"s_movk_i32 s{sT}, 3456")
    E(f"s_cmp_lt_u32 s{w}, 4")
    E(f"s_cselect_b32 s{sT}, 8192, s{sT}")
    E(f"s_cselect_b32 s{sT+1}, 2, 1")
    E(f"s_lshl_b32 s{sPITCH32}, s{sT}, 5")
    E(f"s_cmp_ge_u32 s{w}, 6")
    E(f"s_cselect_b32 s{sT+2}, 4, 0")
    E(f"s_and_b32 s{sT+3}, s{w}, 1"); E(f"s_lshl_b32 s{sT+3}, s{sT+3}, 4")
    E(f"v_add_u32 v6, s{sT+3}, v1")
    E(f"v_mul_lo_u32 v6, v6, s{sT}")
    E(f"v_and_b32 v7, 1, v3")
    E(f"v_lshlrev_b32 v7, s{sT+1}, v7")
    E(f"v_add_u32 v7, s{sT+2}, v7")
    E(f"v_xor_b32 v7, v7, v4")
    E(f"v_lshl_add_u32 v{DW}, v7, 4, v6")
    E(f"s_lshl_b32 s{sT+4}, s{sT}, 3"); E(f"s_sub_u32 s{sT+4}, s{sT+4}, 1024")
    E(f"v_add_u32 v{DW+1}, s{sT+4}, v{DW}")
    E(f"s_lshl_b32 s{sM0W}, s{w}, 11")
    E(f"s_lshl_b32 s{sM0X}, s{w}, 12"); E(f"s_add_u32 s{sM0X}, s{sM0X}, {LDS_X}")
    P.force_wait("lgkmcnt(0)")
    E(f"s_lshl_b32 s{sT+5}, s{sR_}, 3"); E(f"s_add_u32 s{sT+5}, s{sT+5}, s{w}")
    E(f"s_mul_i32 s{sT+5}, s{sT+5}, {32*1280}")
    E(f"s_add_u32 s{sX}, s{pX}, s{sT+5}"); E(f"s_addc_u32 s{sX+1}, s{pX+1}, 0")
    E(f"s_mov_b32 s{sX+2}, {32*1280}"); E(f"s_mov_b32 s{sX+3}, 0x20000")
    E(f"s_cmp_ge_u32 s{w}, 6")
    E(f"s_cselect_b32 s{sT+6}, s{pWU}, s{pWG}"); E(f"s_cselect_b32 s{sT+7}, s{pWU+1}, s{pWG+1}")
    E(f"s_lshl_b32 s{sT+8}, s{sH_}, 7")
    E(f"s_sub_u32 s{sT+9}, {640*3456}, s{sT+8}")
    E(f"s_cmp_lt_u32 s{sH_}, 27")
    E(f"s_cselect_b32 s{sT+9}, s{sT+9}, 0")
    E(f"s_cselect_b32 s{sT+8}, s{sT+8}, 0")
    E(f"s_lshl_b32 s{sT+10}, s{sH_}, 8"); E(f"s_lshr_b32 s{sT+11}, s{w}, 1"); E(f"s_lshl_b32 s{sT+11}, s{sT+11}, 7")
    E(f"s_add_u32 s{sT+10}, s{sT+10}, s{sT+11}")
    E(f"s_sub_u32 s{sT+11}, {640*8192}, s{sT+10}")
    E(f"s_cmp_lt_u32 s{w}, 4")
    E(f"s_cselect_b32 s{sT+6}, s{pWQ}, s{sT+6}"); E(f"s_cselect_b32 s{sT+7}, s{pWQ+1}, s{sT+7}")
    E(f"s_cselect_b32 s{sT+8}, s{sT+10}, s{sT+8}"); E(f"s_cselect_b32 s{sW+2}, s{sT+11}, s{sT+9}")
    E(f"s_add_u32 s{sW}, s{sT+6}, s{sT+8}"); E(f"s_addc_u32 s{sW+1}, s{sT+7}, 0")
    E(f"s_mov_b32 s{sW+3}, 0x20000")
    E(f"s_mov_b32 s{sWOFF}, 0"); E(f"s_mov_b32 s{sXOFF}, 0")
    for x in dma_w(0): emit(P, x)
    for x in dma_x(0): emit(P, x)
    for x in dma_w(1): emit(P, x)
    for x in dma_w(2): emit(P, x)
    for x in dma_x(1): emit(P, x)
    for x in dma_w(3): emit(P, x)
    E(f"v_bfe_u32 v8, v{L}, 2, 2")
    E(f"v_and_b32 v9, 3, v{L}")
    E(f"v_lshrrev_b32 v10, 5, v{L}")
    E(f"v_and_b32 v11, 31, v{L}")
    E(f"v_and_b32 v12, 1, v3")
    E(f"v_lshrrev_b32 v13, 1, v8")
    E(f"v_lshl_add_u32 v14, v10, 3, v8")
    E(f"v_lshlrev_b32 v14, 7, v14")
    E(f"v_lshl_add_u32 v15, v13, 6, v14")
    E(f"v_lshl_add_u32 v15, v12, 5, v15")
    E(f"v_and_b32 v16, 1, v9"); E(f"v_lshl_add_u32 v15, v16, 4, v15")
    E(f"v_lshrrev_b32 v17, 1, v9"); E(f"v_lshl_add_u32 v15, v17, 3, v15")
    E(f"v_mul_u32_u24 v18, {4096+64}, v12")
    E(f"v_add3_u32 v18, v18, v14, 0")
    E(f"v_lshl_add_u32 v18, v13, 5, v18")
    E(f"v_lshl_add_u32 v18, v9, 3, v18")
    E(f"v_add_u32 v18, 8192, v18")
    E(f"s_and_b32 s{sT}, s{w}, 3")
    for j in range(4):
        E(f"s_xor_b32 s{sT+1}, s{sT}, {j}")
        E(f"s_and_b32 s{sT+2}, s{sT+1}, 1"); E(f"s_lshl_b32 s{sT+2}, s{sT+2}, 6")
        E(f"s_lshr_b32 s{sT+3}, s{sT+1}, 1"); E(f"s_lshl_b32 s{sT+3}, s{sT+3}, 12")
        E(f"s_or_b32 s{sT+2}, s{sT+2}, s{sT+3}")
        E(f"v_xor_b32 v{AW+j}, s{sT+2}, v15")
        E(f"s_lshl_b32 s{sT+3}, s{sT+1}, 5")
        E(f"v_xor_b32 v{AW+4+j}, s{sT+3}, v18")
        E(f"s_lshl_b32 s{sT+4}, s{sH_}, 1"); E(f"s_lshr_b32 s{sT+5}, s{sT+1}, 1")
        E(f"s_add_u32 s{sT+4}, s{sT+4}, s{sT+5}"); E(f"s_add_u32 s{sT+4}, s{sT+4}, 128"); E(f"s_lshl_b32 s{sT+4}, s{sT+4}, 12")
        E(f"s_and_b32 s{sT+5}, s{sT+1}, 1"); E(f"s_lshl_b32 s{sT+5}, s{sT+5}, 9")
        E(f"s_add_u32 s{sHO+j}, s{sT+4}, s{sT+5}")
        E(f"s_lshl_b32 s{sT+4}, s{sH_}, 14"); E(f"s_add_u32 s{sOO+j}, s{sT+4}, {j*4096}")
    E(f"s_cmp_lt_u32 s{w}, 4")
    E("s_cbranch_scc1 L_noswap")
    for j in range(4): E(f"v_swap_b32 v{AW+j}, v{AW+4+j}")
    P.label("L_noswap"); P.nop(2)
    E(f"v_bfe_u32 v19, v{L}, 1, 3"); E(f"v_xor_b32 v19, v19, v10")
    E(f"v_lshlrev_b32 v19, 4, v19"); E(f"v_lshl_add_u32 v19, v11, 7, v19")
    E(f"v_add_u32 v{AX}, s{sM0X}, v19")
    for s in range(1, 4): E(f"v_xor_b32 v{AX+s}, {32*s}, v{AX}")
    E(f"v_and_b32 v19, 15, v{L}"); E(f"v_xor_b32 v19, v19, v10"); E(f"v_lshlrev_b32 v19, 4, v19")
    E(f"v_lshl_add_u32 v19, v11, 8, v19")
    E(f"s_lshl_b32 s{sT+1}, s{sT}, 6"); E(f"s_add_u32 s{sT+1}, s{sT+1}, {LDS_SP}")
    E(f"v_xor_b32 v{AK}, s{sT+1}, v19")
    for s in range(1, 8): E(f"v_xor_b32 v{AK+s}, {32*s}, v{AK}")
    E(f"v_lshl_add_u32 v19, v10, 2, v8"); E(f"v_lshlrev_b32 v19, 8, v19")
    E(f"v_lshl_add_u32 v19, v8, 6, v19"); E(f"v_lshl_add_u32 v19, v12, 5, v19"); E(f"v_lshl_add_u32 v19, v9, 3, v19")
    E(f"v_add_u32 v{AV}, {LDS_SP+16384}, v19")
    for d in range(1, 4): E(f"v_xor_b32 v{AV+d}, {64*d}, v{AV}")
    E(f"s_lshl_b32 s{sM0K}, s{w}, 11")
    E(f"v_and_b32 v19, 15, v{L}")
    E(f"v_lshl_add_u32 v20, v3, 8, s{sM0K}")
    E(f"s_and_b32 s{sT+2}, s{w}, 1"); E(f"s_lshl_b32 s{sT+2}, s{sT+2}, 3")
    E(f"v_add_u32 v21, s{sT+2}, v3"); E(f"v_xor_b32 v21, v21, v19")
    E(f"v_lshl_add_u32 v{DK}, v21, 4, v20")
    E(f"v_xor_b32 v{DK+1}, 64, v{DK}")
    E(f"v_lshlrev_b32 v21, 2, v3"); E(f"v_xor_b32 v21, v21, v19")
    E(f"v_lshl_add_u32 v{DV}, v21, 4, v20")
    E(f"v_lshl_add_u32 v21, v10, 4, v19"); E(f"v_lshlrev_b32 v21, 4, v21")
    E(f"v_lshl_add_u32 v{VST}, v12, 10, v21")
    E(f"v_lshlrev_b32 v21, 4, v10"); E(f"v_lshl_add_u32 v21, v12, 2, v21"); E(f"v_add_u32 v21, v21, v8")
    E(f"v_lshlrev_b32 v21, 7, v21")
    E(f"v_lshl_add_u32 v22, v12, 1, v13"); E(f"v_xor_b32 v22, v22, v17")
    E(f"v_lshl_add_u32 v21, v22, 4, v21"); E(f"v_lshl_add_u32 v21, v16, 3, v21")
    E(f"s_lshl_b32 s{sT+2}, s{w}, 12"); E(f"s_add_u32 s{sT+2}, s{sT+2}, {LDS_SP}")
    E(f"v_add_u32 v{T+5}, s{sT+2}, v21")
    E(f"s_lshl_b32 s{sT+2}, s{sH_}, 19"); E(f"s_add_u32 s{sT+2}, s{sT+2}, {1536*256}")
    for (sd, pp) in ((sK, pK), (sV, pV)):
        E(f"s_add_u32 s{sd}, s{pp}, s{sT+2}"); E(f"s_addc_u32 s{sd+1}, s{pp+1}, 0")
        E(f"s_mov_b32 s{sd+2}, {512*256}"); E(f"s_mov_b32 s{sd+3}, 0x20000")
    E(f"s_mov_b32 s{sKOFF}, 0"); E(f"s_mov_b32 s{sVOFF}, 0")
    E(f"s_lshl_b32 s{sT+2}, s{sR_}, 2"); E(f"s_lshr_b32 s{sT+3}, s{w}, 1"); E(f"s_add_u32 s{sT+2}, s{sT+2}, s{sT+3}")
    E(f"s_mul_i32 s{sT+2}, s{sT+2}, {NU*4096}")
    E(f"s_and_b32 s{sT+3}, s{w}, 1"); E(f"s_lshl_b32 s{sT+3}, s{sT+3}, 11"); E(f"s_add_u32 s{sT+2}, s{sT+2}, s{sT+3}")
    E(f"s_add_u32 s{sO}, s{pWS}, s{sT+2}"); E(f"s_addc_u32 s{sO+1}, s{pWS+1}, 0")
    E(f"s_mov_b32 s{sO+2}, {NU*4096}"); E(f"s_mov_b32 s{sO+3}, 0x20000")
    E(f"s_mov_b32 s{sH}, s{sO}"); E(f"s_mov_b32 s{sH+1}, s{sO+1}"); E(f"s_mov_b32 s{sH+3}, 0x20000")
    E(f"s_cmp_lt_u32 s{sH_}, 27"); E(f"s_cselect_b32 s{sH+2}, {NU*4096}, 0")
    E(f"s_lshl_b32 s{sT+2}, s2, 3"); E(f"s_add_u32 s{sT+2}, s{sT+2}, s{w}")
    E(f"s_mul_i32 s{sT+3}, s{sT+2}, 6554"); E(f"s_lshr_b32 s{sT+3}, s{sT+3}, 16")
    E(f"s_mul_i32 s{sT+4}, s{sT+3}, 10"); E(f"s_sub_u32 s{sT+4}, s{sT+2}, s{sT+4}")
    E(f"s_min_u32 s{sT+3}, s{sT+3}, {NU-1}")
    E(f"s_sub_u32 s{sT+5}, s{sT+3}, 128")
    E(f"s_cmp_lt_u32 s{sT+3}, 128")
    E(f"s_cselect_b32 s{sT+5}, s{sT+3}, s{sT+5}")
    E(f"s_cselect_b32 s{sT+6}, s{pWO}, s{pWD}"); E(f"s_cselect_b32 s{sT+7}, s{pWO+1}, s{pWD+1}")
    E(f"s_mul_i32 s{sT+5}, s{sT+5}, {32*1280}"); E(f"s_lshl_b32 s{sT+8}, s{sT+4}, 7"); E(f"s_add_u32 s{sT+5}, s{sT+5}, s{sT+8}")
    E(f"s_add_u32 s{sRS}, s{sT+6}, s{sT+5}"); E(f"s_addc_u32 s{sRS+1}, s{sT+7}, 0")
    E(f"s_sub_u32 s{sT+8}, {32*1280}, s{sT+8}")
    E(f"s_cmp_lt_u32 s{sT+2}, {NU*10}")
    E(f"s_cselect_b32 s{sRS+2}, s{sT+8}, 0"); E(f"s_mov_b32 s{sRS+3}, 0x20000")
    E(f"s_cselect_b32 s{sRD+2}, {8*NU*5*1024}, 0"); E(f"s_mov_b32 s{sRD+3}, 0x20000")
    E(f"s_add_u32 s{sRD}, s{pWS}, {WT_OFF}"); E(f"s_addc_u32 s{sRD+1}, s{pWS+1}, 0")
    for b in range(4):
        E(f"s_lshl_b32 s{sT+5}, s{sT+4}, 2"); E(f"s_add_u32 s{sT+5}, s{sT+5}, {b}")
        E(f"s_mul_i32 s{sT+6}, s{sT+5}, 52"); E(f"s_lshr_b32 s{sT+6}, s{sT+6}, 8")
        E(f"s_mul_i32 s{sT+7}, s{sT+6}, 5"); E(f"s_sub_u32 s{sT+7}, s{sT+5}, s{sT+7}")
        E(f"s_mul_i32 s{sT+6}, s{sT+6}, {NU}"); E(f"s_add_u32 s{sT+6}, s{sT+6}, s{sT+3}")
        E(f"s_mul_i32 s{sT+6}, s{sT+6}, 5"); E(f"s_add_u32 s{sT+6}, s{sT+6}, s{sT+7}")
        E(f"s_lshl_b32 s{sRO+b}, s{sT+6}, 10")
    for r in (SX, SXX, CS): E(f"v_mov_b32 v{r}, 0")

def dma_w(s):
    slot = (s % 4) * 16384
    return [f"s_add_u32 m0, s{sM0W}, {slot}",
            (f"buffer_load_dwordx4 v{DW}, {sr(sW)}, s{sWOFF} offen lds", f"W{s}"),
            (f"buffer_load_dwordx4 v{DW+1}, {sr(sW)}, s{sWOFF} offen offset:1024 lds", f"W{s}"),
            f"s_add_u32 s{sWOFF}, s{sWOFF}, s{sPITCH32}"]
def dma_x(xs):
    return [f"s_add_u32 m0, s{sM0X}, {(xs % 2) * 32768}"] + \
           [(f"buffer_load_dwordx4 v{DX+i}, {sr(sX)}, s{sXOFF} offen offset:{1024*i} lds", f"X{xs}") for i in range(4)] + \
           [f"s_add_u32 s{sXOFF}, s{sXOFF}, 128"]
def kslot(c): return LDS_SP if c == 0 else ((c - 1) % 4) * 16384
def vslot(c): return LDS_SP + 16384 if c == 0 else LDS_X + ((c - 1) % 4) * 16384
def dma_k(c):
    return [f"s_add_u32 m0, s{sM0K}, {kslot(c)}",
            (f"buffer_load_dwordx4 v{DK}, {sr(sK)}, s{sKOFF} offen lds", f"K{c}"),
            (f"buffer_load_dwordx4 v{DK+1}, {sr(sK)}, s{sKOFF} offen offset:1024 lds", f"K{c}"),
            f"s_add_u32 s{sKOFF}, s{sKOFF}, 16384"]
def dma_v(c):
    return [f"s_add_u32 m0, s{sM0K}, {vslot(c)}",
            (f"buffer_load_dwordx4 v{DV}, {sr(sV)}, s{sVOFF} offen lds", f"V{c}"),
            (f"buffer_load_dwordx4 v{DV}, {sr(sV)}, s{sVOFF} offen offset:1024 lds", f"V{c}"),
            f"s_add_u32 s{sVOFF}, s{sVOFF}, 16384"]

def afrag(j, n):
    if j == 0:
        b = A0 + 4 * (n % 2); return vr(b, 4), vr(b, 2), vr(b + 2, 2)
    b = AF + 4 * j; return ar(b, 4), ar(b, 2), ar(b + 2, 2)
def rd_a(j, n):
    s = n // 2; off = (s % 4) * 16384 + (n % 2) * 16 * 128
    _, lo, hi = afrag(j, n)
    return [f"ds_read_b64_tr_b16 {lo}, v{AW+j} offset:{off}", f"ds_read_b64_tr_b16 {hi}, v{AW+j} offset:{off+512}"]
def rd_x(n):
    xs = n // 4
    return [f"ds_read_b128 {vr(XF+4*(n%2),4)}, v{AX+n%4} offset:{(xs%2)*32768}"]

def stats(n):
    L = []
    xb = XF + 4 * (n % 2); ab = A0 + 4 * (n % 2)
    for i in range(4):
        L += [f"v_lshlrev_b32 v{T}, 16, v{xb+i}", f"v_and_b32 v{T+1}, s{sMASK}, v{xb+i}",
              f"v_add_f32 v{SX}, v{SX}, v{T}", f"v_fmac_f32 v{SXX}, v{T}, v{T}",
              f"v_add_f32 v{SX}, v{SX}, v{T+1}", f"v_fmac_f32 v{SXX}, v{T+1}, v{T+1}",
              f"v_lshlrev_b32 v{T+2}, 16, v{ab+i}", f"v_and_b32 v{T+3}, s{sMASK}, v{ab+i}",
              f"v_add_f32 v{CS}, v{CS}, v{T+2}", f"v_add_f32 v{CS}, v{CS}, v{T+3}"]
    return L

def phase1(P, cfg):
    E = P.E
    P.wait_vm_tag("X0")
    E("s_barrier")
    for x in rd_x(0) + sum((rd_a(j, 0) for j in range(8)), []): E(x)
    for n in range(40):
        s = n // 2
        mf = []
        for j in range(8):
            c = vr(ACC + 16 * j, 16) if n > 0 else "0"
            mf.append(f"v_mfma_f32_32x32x16_bf16 {vr(ACC+16*j,16)}, {afrag(j,n)[0]}, {vr(XF+4*(n%2),4)}, {c}")
        fill = [[] for _ in range(8)]
        pre = []
        if n % 2 == 1 and s + 1 < 20:
            P.wait_vm_tag(f"W{s+1}")
            E("s_barrier")
            if s >= 1:
                if s + 3 < 20: fill[1] += dma_w(s + 3)
                else: fill[1] += dma_k(s + 3 - 19)
            if s == 18: fill[3] += dma_v(1)
        if n + 1 < 40:
            if n % 4 == 3: fill[0].append(lambda t=f"X{(n+1)//4}": P.wait_vm_tag(t))
            fill[0] += rd_x(n + 1) + rd_a(0, n + 1)
            for j in range(1, 8): fill[j] = rd_a(j, n + 1) + fill[j]
        if n % 4 == 3 and n // 4 + 2 < 10: fill[4] += dma_x(n // 4 + 2)
        RL = cfg.get("rl", 8)
        if n == RL:
            fill[5] += [f"s_add_u32 m0, s{sM0X}, {LDS_SP-LDS_X}"] + \
                [(f"buffer_load_dwordx4 v{DX+i}, {sr(sRS)}, 0 offen offset:{1024*i} lds", "RL") for i in range(4)]
        if n == RL + 8:
            fill[2].append(lambda: P.wait_vm_tag("RL"))
            for x in range(4):
                it = []
                if x: it.append(f"v_xor_b32 v{T+4}, {32*x}, v{T+5}")
                a = T + 4 if x else T + 5
                it.append(f"ds_read_b64_tr_b16 {ar(QF+4*x,2)}, v{a}")
                it.append(f"ds_read_b64_tr_b16 {ar(QF+4*(x^2)+2,2)}, v{a} offset:1024")
                fill[2 + x] += it
        if n == RL + 10:
            fill[2].append(f"v_lshlrev_b32 v{T+4}, 4, v{LANE}")
            for b in range(4):
                fill[3 + b].append(f"buffer_store_dwordx4 {ar(QF+4*b,4)}, v{T+4}, {sr(sRD)}, s{sRO+b} offen{cfg.get('stflag','')}")
        if n == RL + 13:
            fill[5] += dma_k(0); fill[6] += dma_v(0)
        if not cfg.get("nostats"):
            fill = merge(fill, spread(stats(n), 8))
        weave(P, mf, fill)
```

```python
from k1 import *

def bf16_round(E, dst, src):
    E(f"v_cvt_pk_bf16_f32 v{dst}, v{src}, v{src}")
    E(f"v_and_b32 v{dst}, s{sMASK}, v{dst}")

def epilogue_common(P, cfg):
    E = P.E
    a, b, c = T + 1, T + 2, T + 3
    bf16_round(E, a, CS)
    E(f"v_sub_f32 v{b}, v{CS}, v{a}")
    bf16_round(E, c, b)
    E(f"v_sub_f32 v{T+4}, v{b}, v{c}")
    E(f"v_cvt_pk_bf16_f32 v{A0}, v{a}, v{c}")
    E(f"v_cvt_pk_bf16_f32 v{A0+1}, v{T+4}, 0")
    E(f"v_lshlrev_b32 v{T+4}, 3, v{LANE}")
    E(f"v_add_u32 v{T+5}, s{sM0X}, v{T+4}")
    E(f"ds_write_b64 v{T+5}, {vr(A0,2)} offset:32768")
    E(f"v_mov_b32 v{a}, v{SX}"); E(f"v_mov_b32 v{b}, v{SXX}")
    E(f"v_permlane32_swap_b32 v{a}, v{SX}"); E(f"v_permlane32_swap_b32 v{b}, v{SXX}")
    E(f"v_add_f32 v{SX}, v{SX}, v{a}"); E(f"v_add_f32 v{SXX}, v{SXX}, v{b}")
    E(f"v_mul_f32 v{SX}, {hex(f2u(1/640))}, v{SX}")
    E(f"v_mul_f32 v{SXX}, {hex(f2u(1/640))}, v{SXX}")
    E(f"v_fma_f32 v{SXX}, -v{SX}, v{SX}, v{SXX}")
    E(f"v_max_f32 v{SXX}, 0, v{SXX}")
    P.wait_all(vm=False)
    P.wait_vm_tag("K0")
    E("s_barrier")
    for j in range(8):
        E(f"s_xor_b32 s{sT}, s{sWV}, {j}"); E(f"s_lshl_b32 s{sT}, s{sT}, 12"); E(f"s_add_u32 s{sT}, s{sT}, {LDS_X}")
        E(f"v_add_u32 v{AW+j}, s{sT}, v{T+4}")
        E(f"ds_read_b64 {ar(AF+4*j,2)}, v{AW+j} offset:32768")
    for x in dma_k(3) + dma_v(2) + dma_k(4): emit(P, x)
    E(f"v_cvt_pk_bf16_f32 v{XF}, -v{SX}, -v{SX}")
    E(f"v_mov_b32 v{XF+1}, v{XF}"); E(f"v_mov_b32 v{XF+2}, 0"); E(f"v_mov_b32 v{XF+3}, 0")
    E(f"v_accvgpr_write_b32 a{AF+2}, 0"); E(f"v_accvgpr_write_b32 a{AF+3}, 0")
    bf16_round(E, a, SXX)
    E(f"v_add_f32 v{a}, {hex(f2u(1e-5))}, v{a}")
    bf16_round(E, a, a)
    E(f"v_sqrt_f32 v{a}, v{a}")
    bf16_round(E, a, a)
    E(f"v_rcp_f32 v{T}, v{a}")

def corr_mfma(j):
    return f"v_mfma_f32_32x32x16_bf16 {vr(ACC+16*j,16)}, {ar(AF+4*j,4)}, {vr(XF,4)}, {vr(ACC+16*j,16)}"

def q_epi(QA):
    L = [f"v_mul_f32 v{T+1}, {hex(f2u(LOG2E * 128 ** -0.5))}, v{T}"]
    for i in range(0, 64, 2):
        t = T + 2 + (i // 2) % 2 * 2
        L += [f"v_mul_f32 v{t}, v{T+1}, v{QA+i}", f"v_mul_f32 v{t+1}, v{T+1}, v{QA+i+1}",
              f"v_cvt_pk_bf16_f32 v{t}, v{t}, v{t+1}", f"v_accvgpr_write_b32 a{QF+i//2}, v{t}"]
    return L

def f_epi(FA, cfg, c1, c2, tmp):
    L = [f"v_mul_f32 v{c1}, {hex(f2u(-LOG2E))}, v{T}", f"v_mul_f32 v{c2}, v{T}, v{T}"]
    for j in range(4):
        b = FA + 16 * j
        for r in range(0, 8, 2):
            t0, t1 = tmp[0], tmp[1]
            L += [f"v_mul_f32 v{t0}, v{c1}, v{b+r}", f"v_mul_f32 v{t1}, v{c1}, v{b+r+1}",
                  f"v_exp_f32 v{t0}, v{t0}", f"v_exp_f32 v{t1}, v{t1}",
                  f"v_mul_f32 v{b+r}, v{b+r}, v{b+8+r}", f"v_mul_f32 v{b+r+1}, v{b+r+1}, v{b+9+r}",
                  f"v_add_f32 v{t0}, 1.0, v{t0}", f"v_add_f32 v{t1}, 1.0, v{t1}",
                  f"v_rcp_f32 v{t0}, v{t0}", f"v_rcp_f32 v{t1}, v{t1}",
                  f"v_mul_f32 v{b+r}, v{c2}, v{b+r}", f"v_mul_f32 v{b+r+1}, v{c2}, v{b+r+1}",
                  f"v_mul_f32 v{t0}, v{t0}, v{b+r}", f"v_mul_f32 v{t1}, v{t1}, v{b+r+1}",
                  f"v_cvt_pk_bf16_f32 v{b+8+r//2}, v{t0}, v{t1}"]
        L.append(f"buffer_store_dwordx4 {vr(b+8,4)}, v{VST}, {sr(sH)}, s{sHO+j} offen{cfg.get('stflag','')}")
    return L

def kaddr_off(c): return 0 if c == 0 else kslot(c)
def vaddr_off(c): return 0 if c == 0 else vslot(c) - LDS_X
class Seq:
    pass

def attn_items(S, O):
    ops = []
    def qk(c):
        Sb = S[c % 2]
        for i in range(16):
            kt, s = i % 2, i // 2
            d = vr(Sb + 16 * kt, 16)
            cc = d if s > 0 else ("0" if c == 0 else vr(NEGM, 16))
            ops.append(("QK", c, i,
                        lambda f, d=d, cc=cc, s=s: f"v_mfma_f32_32x32x16_bf16 {d}, {ar(f,4)}, {ar(QF+4*s,4)}, {cc}",
                        lambda f, s=s, kt=kt, c=c: [f"ds_read_b128 {ar(f,4)}, v{AK+s} offset:{kaddr_off(c)+8192*kt}"]))
    def pv(c):
        for i in range(16):
            u, dt = i // 4, i % 4
            d = vr(O + 16 * dt, 16)
            cc = d if (c > 0 or u > 0) else "0"
            ops.append(("PV", c, i,
                        lambda f, d=d, cc=cc, u=u: f"v_mfma_f32_32x32x16_bf16 {d}, {ar(f,4)}, {vr(PP+4*u,4)}, {cc}",
                        lambda f, u=u, dt=dt, c=c: [f"ds_read_b64_tr_b16 {ar(f,2)}, v{AV+dt} offset:{vaddr_off(c)+4096*u}",
                                                    f"ds_read_b64_tr_b16 {ar(f+2,2)}, v{AV+dt} offset:{vaddr_off(c)+4096*u+2048}"]))
    qk(0)
    for c in range(8):
        if c < 7: qk(c + 1)
        pv(c)
    return ops

def softmax(Sb, first):
    L = []; W = []
    for i in range(0, 32, 2):
        t = T + (i // 2) % 2 * 2
        L += [f"v_exp_f32 v{t}, v{Sb+i}", f"v_exp_f32 v{t+1}, v{Sb+i+1}"]; W += [2, 2]
        if i == 0: L += [f"v_add_f32 v{LC}, v{t}, v{t+1}"]; W += [1]
        else: L += [f"v_add_f32 v{LC}, v{LC}, v{t}", f"v_add_f32 v{LC}, v{LC}, v{t+1}"]; W += [1, 1]
        L += [f"v_cvt_pk_bf16_f32 v{PP+i//2}, v{t}, v{t+1}"]; W += [1]
    return L, W

def rowmax(Sb, dst, tmp):
    L = [f"v_max3_f32 v{dst}, v{Sb}, v{Sb+1}, v{Sb+2}"]
    for i in range(3, 31, 2): L.append(f"v_max3_f32 v{dst}, v{dst}, v{Sb+i}, v{Sb+i+1}")
    L.append(f"v_max_f32 v{dst}, v{dst}, v{Sb+31}")
    L += [f"v_mov_b32 v{tmp}, v{dst}", f"v_permlane32_swap_b32 v{tmp}, v{dst}", f"v_max_f32 v{dst}, v{dst}, v{tmp}"]
    return L

def attention(P, g, cfg, fallbacks):
    E = P.E
    QA = 64 * g; FA = 64 * (1 - g)
    S = [QA, QA + 32]; O = FA
    qj = range(4 * g, 4 * g + 4); fj = range(4 * (1 - g), 4 * (1 - g) + 4)
    for j in list(qj) + list(fj): E(corr_mfma(j))
    ops = attn_items(S, O)
    NF = 8; LEAD = 8
    for x in q_epi(QA): E(x)
    for k in range(LEAD):
        for x in ops[k][4](AF + 4 * (k % NF)): E(x)
    for x in f_epi(FA, cfg, AW, AW + 1, (AW + 2, AW + 3)): E(x)
    k = 0
    while k < len(ops):
        ph, c, _, _, _ = ops[k]
        seg = ops[k:k + 16]
        mf = [o[3](AF + 4 * ((k + i) % NF)) for i, o in enumerate(seg)]
        fill = [[] for _ in range(16)]
        for i in range(16):
            nk = k + i + LEAD
            if nk < len(ops):
                pre = []
                nph, nc, ni = ops[nk][:3]
                if ni == 0:
                    if nph == "QK":
                        pre.append(lambda nc=nc: (P.wait_vm_tag(f"K{nc}"), P.wait_vm_tag(f"V{nc-1}"), E("s_barrier")))
                        if nc == 1: pre += [f"v_subrev_u32 v{AK+s}, {LDS_SP}, v{AK+s}" for s in range(8)]
                        post = []
                        if nc >= 2 and nc + 3 < 8: post += dma_k(nc + 3)
                        if nc == 1: post += dma_v(3) + dma_v(4)
                        if nc >= 4 and nc + 1 < 8: post += dma_v(nc + 1)
                        if i + 1 < 16: fill[i + 1] += post
                        else: raise ValueError
                    elif nc == 7:
                        pre.append(lambda: (P.wait_vm_tag("V7"), E("s_barrier")))
                    if nph == "PV" and nc == 1:
                        pre += [f"v_subrev_u32 v{AV+d}, {LDS_SP+16384-LDS_X}, v{AV+d}" for d in range(4)]
                fill[i] = pre + ops[nk][4](AF + 4 * (nk % NF)) + fill[i]
        sm_c = None
        if ph == "QK" and c >= 1:
            sm_c = c - 1
            L, W = softmax(S[sm_c % 2], False)
            fill = merge(fill, spread(L, 16, W))
        if ph == "PV" and c == 7:
            sm_c = 7
            L, W = softmax(S[1], False)
            for x in L: E(x)
            check(P, g, 7, S, O, fallbacks)
            sm_c = None
        weave(P, mf, fill)
        if ph == "QK" and c == 0:
            for x in rowmax(S[0], T + 4, T + 5): E(x)
            for i in range(16): E(f"v_sub_f32 v{NEGM+i}, 0, v{T+4}")
            for i in range(32): E(f"v_sub_f32 v{S[0]+i}, v{S[0]+i}, v{T+4}")
            E(f"v_mov_b32 v{LS}, 0")
        if sm_c is not None: check(P, g, sm_c, S, O, fallbacks)
        k += 16
    E(f"v_mov_b32 v{T}, v{LS}"); E(f"v_permlane32_swap_b32 v{T}, v{LS}"); E(f"v_add_f32 v{LS}, v{LS}, v{T}")
    E(f"v_rcp_f32 v{LS}, v{LS}")
    for dt in range(4):
        b = O + 16 * dt
        for i in range(16): E(f"v_mul_f32 v{b+i}, v{LS}, v{b+i}")
        for i in range(8): E(f"v_cvt_pk_bf16_f32 v{S[0]+8*dt+i}, v{b+2*i}, v{b+2*i+1}")
        for uu in range(2):
            E(f"buffer_store_dwordx4 {vr(S[0]+8*dt+4*uu,4)}, v{VST}, {sr(sO)}, s{sOO+dt} offen offset:{512*uu}{cfg.get('stflag','')}")
    E("s_endpgm")

def check(P, g, c, S, O, fallbacks):
    E = P.E
    if c > 0:
        E(f"v_cmp_nle_f32 vcc, v{LC}, s{sTHR}")
        E(f"s_cbranch_vccnz L_fb_{g}_{c}")
        P.label(f"L_ret_{g}_{c}")
        fallbacks.append((g, c, S, O))
    E(f"v_add_f32 v{LS}, v{LS}, v{LC}")

def fallback(P, g, c, S, O):
    P.lg = []; P.vm = []; P.hist = []
    E = P.E
    P.label(f"L_fb_{g}_{c}")
    P.nop(16)
    Sb = S[c % 2]; Sn = S[(c + 1) % 2]
    for x in rowmax(Sb, T + 4, T + 5): E(x)
    E(f"v_max_f32 v{T+4}, 0, v{T+4}")
    E(f"v_exp_f32 v{T+5}, -v{T+4}")
    for i in range(16): E(f"v_sub_f32 v{NEGM+i}, v{NEGM+i}, v{T+4}")
    for i in range(32): E(f"v_sub_f32 v{Sb+i}, v{Sb+i}, v{T+4}")
    if c < 7:
        for i in range(32): E(f"v_sub_f32 v{Sn+i}, v{Sn+i}, v{T+4}")
    for i in range(64): E(f"v_mul_f32 v{O+i}, v{T+5}, v{O+i}")
    E(f"v_mul_f32 v{LS}, v{T+5}, v{LS}")
    for x in softmax(Sb, False)[0]: E(x)
    P.nop(4)
    E(f"s_branch L_ret_{g}_{c}")

def gen_k1(name, cfg):
    P = Prog()
    P.raw(f".globl {name}\n.p2align 8\n.type {name},@function\n{name}:")
    prologue(P, cfg)
    P.E(f"s_mov_b32 s{sTHR}, {hex(f2u(2.0**30))}")
    phase1(P, cfg)
    epilogue_common(P, cfg)
    P.E(f"s_cmp_ge_u32 s{sWV}, 4")
    P.E("s_cbranch_scc1 L_grpB")
    st = P.state()
    fb = []
    attention(P, 0, cfg, fb)
    P.label("L_grpB")
    P.set_state(st)
    attention(P, 1, cfg, fb)
    for f in fb: fallback(P, *f)
    P.label("L_k1_end")
    P.raw("  s_endpgm")
    desc = f""".amdhsa_kernel {name}
  .amdhsa_next_free_vgpr {NV+NA}
  .amdhsa_next_free_sgpr 102
  .amdhsa_accum_offset {NV}
  .amdhsa_group_segment_fixed_size 0
  .amdhsa_kernarg_size 96
  .amdhsa_user_sgpr_count 2
  .amdhsa_user_sgpr_kernarg_segment_ptr 1
  .amdhsa_system_sgpr_workgroup_id_x 1
.end_amdhsa_kernel
"""
    return P, desc
```

```python
from k1 import *

def gen_k2(name, cfg):
    P = Prog(); E = P.E
    P.raw(f".globl {name}\n.p2align 8\n.type {name},@function\n{name}:")
    KA = 76
    ACC2 = 0
    FR = [80, 116]
    FRA = [0, 36]
    GS = 152
    XS = 162
    V16, V16B, VW, VW8, VO, TT = 168, 169, 170, 173, 176, 177
    NV2 = 184; NA2 = 72
    sA, sB, sXO, sOUT = 8, 12, 16, 20
    sAo, sBo, sWv, sEO = 40, 41, 42, 44
    D = 4
    def freg(buf, i, n=4):
        if buf < 2: return vr(FR[buf] + 4 * i, n)
        return ar(FRA[buf - 2] + 4 * i, n)
    E(f"s_load_dwordx2 s[{KA}:{KA+1}], s[0:1], 0")
    E(f"s_load_dwordx2 s[{KA+2}:{KA+3}], s[0:1], 72")
    E(f"s_load_dwordx2 s[{KA+4}:{KA+5}], s[0:1], 88")
    E("s_cmp_ge_u32 s2, 256")
    E("s_cbranch_scc1 L_k2_end")
    E(f"v_lshrrev_b32 v1, 6, v0"); E(f"v_and_b32 v2, 63, v0")
    E(f"v_readfirstlane_b32 s{sWv}, v1")
    E(f"v_lshlrev_b32 v{V16}, 4, v2"); E(f"v_add_u32 v{V16B}, 4096, v{V16}")
    E(f"s_and_b32 s{sT}, s2, 7"); E(f"s_lshl_b32 s{sT}, s{sT}, 2")
    E(f"s_bfe_u32 s{sT+1}, s2, 0x20003"); E(f"s_add_u32 s{sT}, s{sT}, s{sT+1}")
    E(f"s_lshr_b32 s{sT+1}, s2, 5")
    E(f"s_mul_i32 s{sT+2}, s{sT}, {NU*4096}")
    E(f"s_mul_i32 s{sT+3}, s{sT+1}, {NU*5120}"); E(f"s_add_u32 s{sT+3}, s{sT+3}, {WT_OFF}")
    E(f"s_mul_i32 s{sT+4}, s{sWv}, 7"); E(f"s_add_u32 s{sT+4}, s{sT+4}, 128")
    E(f"s_mul_i32 s{sAo}, s{sT+4}, 5120"); E(f"s_lshl_b32 s{sBo}, s{sT+4}, 12")
    P.force_wait("lgkmcnt(0)")
    E(f"s_add_u32 s{sB}, s{KA+4}, s{sT+2}"); E(f"s_addc_u32 s{sB+1}, s{KA+5}, 0")
    E(f"s_mov_b32 s{sB+2}, {NU*4096}"); E(f"s_mov_b32 s{sB+3}, 0x20000")
    E(f"s_add_u32 s{sA}, s{KA+4}, s{sT+3}"); E(f"s_addc_u32 s{sA+1}, s{KA+5}, 0")
    E(f"s_mov_b32 s{sA+2}, {NU*5120}"); E(f"s_mov_b32 s{sA+3}, 0x20000")
    ldf = cfg.get("ldflag", "")
    def loads(step):
        buf = step % D
        L = []
        if step == 7:
            L += [f"s_mul_i32 s{sAo}, s{sWv}, {16*5120}", f"s_lshl_b32 s{sBo}, s{sWv}, 16"]
        for i in range(4): L.append(f"buffer_load_dwordx4 {freg(buf,5+i)}, v{V16}, {sr(sB)}, s{sBo} offen offset:{1024*i}{ldf}")
        for i in range(4): L.append(f"buffer_load_dwordx4 {freg(buf,i)}, v{V16}, {sr(sA)}, s{sAo} offen offset:{1024*i}{ldf}")
        L.append(f"buffer_load_dwordx4 {freg(buf,4)}, v{V16B}, {sr(sA)}, s{sAo} offen{ldf}")
        L += [f"s_add_u32 s{sAo}, s{sAo}, 5120", f"s_add_u32 s{sBo}, s{sBo}, 4096"]
        return L
    for st in range(D):
        for x in loads(st): E(x)
    E(f"s_lshl_b32 s{sT+5}, s{sT}, 6"); E(f"s_lshr_b32 s{sT+6}, s{sWv}, 1"); E(f"s_lshl_b32 s{sT+6}, s{sT+6}, 4")
    E(f"s_add_u32 s{sT+5}, s{sT+5}, s{sT+6}"); E(f"s_mul_i32 s{sT+5}, s{sT+5}, 1280")
    E(f"s_mul_i32 s{sT+6}, s{sT+1}, 160"); E(f"s_add_u32 s{sT+5}, s{sT+5}, s{sT+6}")
    E(f"v_and_b32 v3, 15, v2"); E(f"v_mul_u32_u24 v3, 1280, v3"); E(f"v_lshrrev_b32 v4, 4, v2")
    E(f"v_lshl_add_u32 v3, v4, 3, v3"); E(f"v_add_u32 v{VO}, s{sT+5}, v3")
    for (sd, pp) in ((sXO, KA), (sOUT, KA + 2)):
        E(f"s_mov_b32 s{sd}, s{pp}"); E(f"s_mov_b32 s{sd+1}, s{pp+1}")
        E(f"s_mov_b32 s{sd+2}, {2048*1280}"); E(f"s_mov_b32 s{sd+3}, 0x20000")
    E(f"s_bitcmp1_b32 s{sWv}, 0")
    for i, (o0, o1) in enumerate(zip((0, 4, 32, 36, 64), (68, 96, 100, 128, 132))):
        E(f"s_cselect_b32 s{sEO+i}, {o1}, {o0}")
    for i in range(5): E(f"buffer_load_dword v{XS+i}, v{VO}, {sr(sXO)}, s{sEO+i} offen")
    E(f"s_mul_i32 s{sT+6}, s{sWv}, 2560")
    E(f"v_add_u32 v{VW}, s{sT+6}, v{V16}"); E(f"v_add_u32 v{VW+1}, 61440, v{VW}"); E(f"v_add_u32 v{VW+2}, 122880, v{VW}")
    E(f"v_lshlrev_b32 v3, 3, v2")
    E(f"v_add_u32 v{VW8}, s{sT+6}, v3"); E(f"v_add_u32 v{VW8+1}, 61440, v{VW8}"); E(f"v_add_u32 v{VW8+2}, 122880, v{VW8}")
    E(f"s_mul_i32 s{sT+6}, s{sWv}, 20480")
    E(f"v_add_u32 v{TT}, s{sT+6}, v{V16}"); E(f"v_add_u32 v{TT+1}, s{sT+6}, v3")
    def reduce_():
        for o in range(8):
            b = ACC2 + 10 * o; wi = o // 3; off = (o % 3) * 20480
            E(f"ds_write_b128 v{VW+wi}, {vr(b,4)} offset:{off}")
            E(f"ds_write_b128 v{VW+wi}, {vr(b+4,4)} offset:{off+1024}")
            E(f"ds_write_b64 v{VW8+wi}, {vr(b+8,2)} offset:{off+2048}")
        P.wait_all(vm=False)
        E("s_barrier")
        for w in range(8):
            b = ACC2 + 10 * w; off = w * 2560
            E(f"ds_read_b128 {vr(b,4)}, v{TT} offset:{off}")
            E(f"ds_read_b128 {vr(b+4,4)}, v{TT} offset:{off+1024}")
            E(f"ds_read_b64 {vr(b+8,2)}, v{TT+1} offset:{off+2048}")
        for w in range(1, 8):
            for i in range(10): E(f"v_add_f32 v{ACC2+i}, v{ACC2+i}, v{ACC2+10*w+i}")
    for st in range(23):
        buf = st % D
        first = st in (0, 7)
        for nb in range(5):
            for mb in range(4):
                d = vr(ACC2 + 4 * (5 * mb + nb), 4)
                E(f"v_mfma_f32_16x16x32_bf16 {d}, {freg(buf,nb)}, {freg(buf,5+mb)}, {'0' if first else d}")
        if st + D < 23:
            for x in loads(st + D): E(x)
        if st == 6:
            reduce_()
            for i in range(10):
                E(f"v_mul_f32 v{TT+2}, {hex(f2u(-LOG2E))}, v{ACC2+i}")
                E(f"v_exp_f32 v{TT+2}, v{TT+2}"); E(f"v_add_f32 v{TT+2}, 1.0, v{TT+2}"); E(f"v_rcp_f32 v{TT+2}, v{TT+2}")
                E(f"v_mul_f32 v{GS+i}, v{TT+2}, v{ACC2+i}")
        if st == 12: E("s_barrier")
    reduce_()
    for i in range(5):
        E(f"v_lshlrev_b32 v{TT+2}, 16, v{XS+i}"); E(f"v_and_b32 v{TT+3}, 0xffff0000, v{XS+i}")
        E(f"v_fmac_f32 v{TT+2}, v{ACC2+2*i}, v{GS+2*i}"); E(f"v_fmac_f32 v{TT+3}, v{ACC2+2*i+1}, v{GS+2*i+1}")
        E(f"v_cvt_pk_bf16_f32 v{XS+i}, v{TT+2}, v{TT+3}")
        E(f"buffer_store_dword v{XS+i}, v{VO}, {sr(sOUT)}, s{sEO+i} offen")
    P.label("L_k2_end")
    P.raw("  s_endpgm")
    desc = f""".amdhsa_kernel {name}
  .amdhsa_next_free_vgpr {NV2+NA2}
  .amdhsa_next_free_sgpr 102
  .amdhsa_accum_offset {NV2}
  .amdhsa_group_segment_fixed_size 0
  .amdhsa_kernarg_size 96
  .amdhsa_user_sgpr_count 2
  .amdhsa_user_sgpr_kernarg_segment_ptr 1
  .amdhsa_system_sgpr_workgroup_id_x 1
.end_amdhsa_kernel
"""
    return P, desc
```

```python
import sys, json
from k1b import gen_k1
from k3 import gen_k3 as gen_k2
NAME = "recurrent_scan__sliding_block_cached__swiglu_ffn__prompt"
def build(cfg, path):
    ref = open(f"cdna_kernels/{NAME}.s.ref").read()
    head = "".join(l + "\n" for l in ref.splitlines() if l.startswith(";") and "@launch" not in l)
    n1, n2 = NAME + "_kernel", "outproj_kernel"
    P1, d1 = gen_k1(n1, cfg)
    P2, d2 = gen_k2(n2, cfg)
    s = head + f"; @launch kernel={n1} grid=(256,1,1) block=(512,1,1) lds=163840\n"
    s += f"; @launch kernel={n2} grid=(256,1,1) block=(512,1,1) lds=163840\n"
    s += '.amdgcn_target "amdgcn-amd-amdhsa--gfx950"\n.text\n' + P1.text() + P2.text()
    s += '.section .rodata,"a"\n.p2align 6\n' + d1 + ".p2align 6\n" + d2
    open(path, "w").write(s)
    print("K1 instrs", P1.count, "nops", P1.nops, "K2", P2.count, P2.nops)
if __name__ == "__main__":
    cfg = json.loads(sys.argv[2]) if len(sys.argv) > 2 else {}
    build(cfg, sys.argv[1] if len(sys.argv) > 1 else f"cdna_kernels/{NAME}.s")
```

```python
import re, copy

TRANS = ("v_exp_f32", "v_log_f32", "v_rcp_f32", "v_rsq_f32", "v_sqrt_f32", "v_sin_f32", "v_cos_f32")
REG_RE = re.compile(r"^(-|\|)?([vas])(\d+)\|?$")
RNG_RE = re.compile(r"^(-|\|)?([vas])\[(\d+):(\d+)\]\|?$")

def regs_of(op):
    op = op.strip()
    m = REG_RE.match(op)
    if m: return [(m.group(2), int(m.group(3)))]
    m = RNG_RE.match(op)
    if m: return [(m.group(2), i) for i in range(int(m.group(3)), int(m.group(4)) + 1)]
    if op in ("vcc", "vcc_lo", "vcc_hi"): return [("vcc", 0)]
    if op == "m0": return [("m0", 0)]
    if op in ("exec", "exec_lo", "exec_hi"): return [("exec", 0)]
    return []

class I:
    __slots__ = ("text", "mn", "rd", "wr", "kind", "tag", "srcc", "passes", "extra")
    def __init__(self, text, tag=None):
        self.text = text.strip(); self.tag = tag; self.srcc = []; self.passes = 0; self.extra = None
        t = self.text
        if t.endswith(":") or t.startswith(".") or t.startswith(";"):
            self.mn = ""; self.rd = []; self.wr = []; self.kind = "label" if t.endswith(":") else "dir"; return
        parts = t.split(None, 1)
        mn = self.mn = parts[0]
        ops = []
        if len(parts) > 1:
            for o in parts[1].split(","):
                o = o.strip().split()
                if o: ops.append(o[0])
        R = [regs_of(o) for o in ops]
        flat = lambda L: [x for l in L for x in l]
        base = re.sub(r"_(e32|e64|sdwa|dpp)$", "", mn)
        has_lds = bool(re.search(r"\blds\b", t))
        if mn.startswith("v_mfma"):
            self.kind = "mfma"; self.wr = R[0]; self.rd = flat(R[1:]); self.srcc = R[3]
            self.passes = 8 if "32x32" in mn else 4
            self.extra = flat(R[1:3])
        elif mn.startswith(("buffer_load", "global_load")):
            if has_lds or "_lds_" in mn:
                self.kind = "dma"; self.wr = []; self.rd = flat(R) + [("m0", 0)]
            else:
                self.kind = "vload"; self.wr = R[0]; self.rd = flat(R[1:])
        elif mn.startswith(("buffer_store", "global_store")):
            self.kind = "vstore"; self.wr = []; self.rd = flat(R)
            self.extra = (R[0] if mn.startswith("buffer") else R[1]) if re.search(r"x[34]$", mn) else []
        elif mn.startswith(("buffer_atomic", "global_atomic")):
            self.kind = "vstore"; self.wr = []; self.rd = flat(R); self.extra = []
            if re.search(r"\bsc0\b", t):
                self.kind = "vload"; self.wr = R[0]
        elif mn.startswith(("buffer_wbl2", "buffer_inv")):
            self.kind = "vstore"; self.wr = []; self.rd = []; self.extra = []
        elif mn.startswith(("ds_read", "ds_bpermute", "ds_permute", "ds_swizzle")):
            self.kind = "dsread"; self.wr = R[0]; self.rd = flat(R[1:])
        elif mn.startswith("ds_"):
            self.kind = "dswrite"; self.wr = []; self.rd = flat(R)
        elif mn.startswith(("s_load", "s_buffer_load", "s_memtime", "s_memrealtime")):
            self.kind = "smem"; self.wr = R[0]; self.rd = flat(R[1:])
        elif mn.startswith("v_"):
            self.kind = "trans" if base in TRANS else "valu"
            if base.startswith("v_permlane") and "swap" in base:
                self.wr = flat(R[:2]); self.rd = flat(R[:2]); self.kind = "perm"
            elif base == "v_swap_b32":
                self.wr = flat(R[:2]); self.rd = flat(R[:2])
            elif base.startswith("v_cmpx"):
                self.wr = [("exec", 0)]; self.rd = flat(R)
            elif base.startswith(("v_add_co", "v_sub_co", "v_addc_co", "v_subb_co")):
                self.wr = flat(R[:2]); self.rd = flat(R[2:])
            else:
                self.wr = R[0]; self.rd = flat(R[1:])
                if base.startswith(("v_fmac", "v_mac", "v_dot2c", "v_writelane")) or "dpp" in t or "row_" in t or "quad_perm" in t:
                    self.rd = self.rd + R[0]
                if base == "v_cndmask_b32" and len(ops) == 3: self.rd = self.rd + [("vcc", 0)]
            if "row_" in t or "quad_perm" in t or "wave_" in t: self.extra = "dpp"
        elif mn in ("s_waitcnt", "s_nop", "s_barrier", "s_setprio", "s_sleep", "s_endpgm"):
            self.kind = mn[2:]; self.wr = []; self.rd = []
        elif mn.startswith(("s_branch", "s_cbranch", "s_setpc")):
            self.kind = "branch"; self.wr = []; self.rd = flat(R)
            if "vcc" in mn: self.rd = [("vcc", 0)]
        elif mn.startswith(("s_cmp", "s_bitcmp")):
            self.kind = "salu"; self.wr = []; self.rd = flat(R)
        elif mn.startswith("s_"):
            self.kind = "salu"; self.wr = R[0]; self.rd = flat(R[1:])
            if "saveexec" in mn: self.wr = self.wr + [("exec", 0)]
        else:
            raise ValueError("unknown instr " + t)

class Prog:
    def __init__(self):
        self.out = []
        self.lg = []
        self.vm = []
        self.hist = []
        self.nops = 0
        self.count = 0
    def state(self): return (copy.deepcopy(self.lg), copy.deepcopy(self.vm), list(self.hist), copy.deepcopy(self.ts))
    def set_state(self, s): self.lg, self.vm, self.hist, self.ts = copy.deepcopy(s[0]), copy.deepcopy(s[1]), list(s[2]), copy.deepcopy(s[3])
    def raw(self, text): self.out.append(text)
    def label(self, name): self.out.append(name + ":")
    def _slot(self, ins, n=1):
        for _ in range(n): self.hist.append(ins)
        self.hist = self.hist[-24:]
    def _wait(self, vm=None, lg=None):
        parts = []
        if vm is not None:
            vm = min(vm, 63)
            if len(self.vm) > vm: parts.append(f"vmcnt({vm})"); self.vm = self.vm[len(self.vm) - vm:] if vm else []
        if lg is not None:
            lg = min(lg, 15)
            if len(self.lg) > lg: parts.append(f"lgkmcnt({lg})"); self.lg = self.lg[len(self.lg) - lg:] if lg else []
        if parts:
            self.out.append("  s_waitcnt " + " ".join(parts)); self._slot(None); self.count += 1
    def wait_vm_tag(self, tag):
        idx = [i for i, (t, _) in enumerate(self.vm) if t == tag]
        if idx: self._wait(vm=len(self.vm) - 1 - idx[-1])
    def wait_all(self, vm=True, lg=True):
        self._wait(vm=0 if vm else None, lg=0 if lg else None)
    def force_wait(self, text):
        self.out.append("  s_waitcnt " + text); self._slot(None)
        if "vmcnt(0)" in text: self.vm = []
        if "lgkmcnt(0)" in text: self.lg = []
    def nop(self, n):
        while n > 0:
            k = min(n, 16); self.out.append(f"  s_nop {k-1}"); self._slot(None, k); n -= k; self.nops += k; self.count += 1
    def _need(self, ins):
        rd, wr = set(ins.rd), set(ins.wr); touch = rd | wr
        need = 0
        H = self.hist
        isv = ins.kind in ("valu", "trans", "perm")
        ismem = ins.kind in ("vload", "vstore", "dma", "dsread", "dswrite")
        isvm = ins.kind in ("vload", "vstore", "dma")
        for d, p in enumerate(reversed(H)):
            if p is None: continue
            pw = set(p.wr)
            req = 0
            if p.kind == "mfma":
                big = 12 if p.passes == 8 else 8
                if ins.kind == "mfma":
                    if pw & set(ins.extra): req = max(req, big)
                    if pw & set(ins.srcc) and not (p.wr == ins.srcc and p.passes == ins.passes): req = max(req, big - 2)
                    if pw & wr and p.wr != ins.srcc: req = max(req, big)
                elif (isv or ismem) and (pw & touch): req = max(req, big)
                if isv and (set(p.srcc) & wr): req = max(req, 7 if p.passes == 8 else 3)
            elif p.kind in ("valu", "trans", "perm"):
                if ins.kind == "mfma" and (pw & rd): req = max(req, 2)
                if ins.kind == "mfma" and ("exec", 0) in pw: req = max(req, 4)
                if p.kind == "trans" and isv and ins.kind != "trans" and (pw & rd): req = max(req, 1)
                if p.kind == "trans" and ins.kind == "trans" and (pw & rd): req = max(req, 1)
                if ins.kind == "perm" and (pw & rd): req = max(req, 2)
                if ins.extra == "dpp" and (pw & rd): req = max(req, 2)
                if ins.mn.startswith(("v_readfirstlane", "v_readlane")) and (pw & rd): req = max(req, 1)
                sw = {x for x in pw if x[0] in ("s", "vcc")}
                if sw & rd:
                    if isv: req = max(req, 4 if ins.mn.startswith(("v_readlane", "v_writelane", "v_div_fmas")) else 2)
                    if isvm: req = max(req, 5)
                    if ins.kind in ("salu", "branch", "smem"): req = max(req, 5 if ins.kind == "branch" else 2)
                if ("exec", 0) in pw and (ins.kind == "perm" or ins.extra == "dpp" or ins.mn.startswith("v_read")): req = max(req, 5)
                if "sdwa" in p.mn or "op_sel" in p.text:
                    if isv and (pw & touch): req = max(req, 1)
                if p.mn.startswith("v_dot") and (pw & touch) and (isv or ismem or ins.kind == "mfma"):
                    req = max(req, 3)
            elif p.kind == "salu":
                if ("m0", 0) in pw and ins.kind == "dma": req = max(req, 1)
            elif p.kind == "vstore":
                if p.extra and (set(p.extra) & wr): req = max(req, 2)
            if req > d: need = max(need, req - d)
        return need
    def E(self, text, tag=None):
        ins = I(text, tag)
        if ins.kind in ("label", "dir"):
            self.out.append(ins.text); return
        touch = set(ins.rd) | set(ins.wr)
        lgN = None; vmN = None
        for i, dst in enumerate(self.lg):
            if dst & touch: lgN = len(self.lg) - 1 - i
        for i, (t, dst) in enumerate(self.vm):
            if dst & touch: vmN = len(self.vm) - 1 - i
        if any(x == "smem" for d in self.lg for x in d) and lgN is not None: lgN = 0
        self._wait(vm=vmN, lg=lgN)
        n = self._need(ins)
        if n: self.nop(n)
        self.out.append("  " + ins.text); self._slot(ins); self.count += 1
        if ins.kind in ("dsread", "dswrite"): self.lg.append(set(ins.wr))
        elif ins.kind == "smem": self.lg.append(set(ins.wr) | {"smem"}); self.lg.append({"smem2"})
        elif ins.kind in ("vload", "vstore", "dma"): self.vm.append((tag, set(ins.wr)))
        if ins.kind == "waitcnt": raise ValueError("use force_wait")
    ts = None
    def stamp(self, real=False):
        if self.ts is None: return
        if real:
            self.E("s_memrealtime s[6:7]"); return
        r = self.ts["regs"][self.ts["n"]]; self.ts["n"] += 1
        self.E(f"s_memtime s[{r}:{r+1}]")
    def stamp_flush(self, li, pws, sWV, srd, v0, v1):
        if self.ts is None: return
        E = self.E
        self.stamp()
        E("s_memrealtime s[4:5]")
        self.force_wait("lgkmcnt(0)")
        E(f"s_add_u32 s{srd}, s{pws}, {(128 << 20) + li * (1 << 20)}"); E(f"s_addc_u32 s{srd+1}, s{pws+1}, 0")
        E(f"s_mov_b32 s{srd+2}, {256*8*64}"); E(f"s_mov_b32 s{srd+3}, 0x20000")
        E(f"s_lshl_b32 s3, s2, 3"); E(f"s_add_u32 s3, s3, s{sWV}"); E("s_lshl_b32 s3, s3, 6")
        E(f"v_mov_b32 v{v0}, s3")
        n = self.ts["n"]
        for i in range(n):
            E(f"v_mov_b32 v{v1}, s{self.ts['regs'][i]}")
            E(f"buffer_store_dword v{v1}, v{v0}, s[{srd}:{srd+3}], 0 offen offset:{4*i}")
        E(f"v_mov_b32 v{v1}, s6"); E(f"buffer_store_dword v{v1}, v{v0}, s[{srd}:{srd+3}], 0 offen offset:56")
        E(f"v_mov_b32 v{v1}, s4"); E(f"buffer_store_dword v{v1}, v{v0}, s[{srd}:{srd+3}], 0 offen offset:52")
        E(f"v_mov_b32 v{v1}, {n}"); E(f"buffer_store_dword v{v1}, v{v0}, s[{srd}:{srd+3}], 0 offen offset:60")
    def text(self): return "\n".join(self.out) + "\n"

def weave(P, mf, fill):
    for m, f in zip(mf, fill):
        if m is not None: emit(P, m)
        for x in f: emit(P, x)

def emit(P, x):
    if callable(x): x()
    elif isinstance(x, tuple): P.E(x[0], x[1])
    else: P.E(x)

def spread(items, n, weights=None, start=0, end=None):
    end = n if end is None else end
    out = [[] for _ in range(n)]
    if not items: return out
    w = weights or [1] * len(items)
    tot = sum(w); acc = 0
    for it, wi in zip(items, w):
        g = start + min(end - start - 1, int((acc + wi / 2) * (end - start) / tot))
        out[g].append(it); acc += wi
    return out

def merge(*fills):
    n = len(fills[0])
    return [sum((f[i] for f in fills), []) for i in range(n)]
```

```python
from ir import *

NU = 182
WT_OFF = 32 << 20
LOG2E = 1.4426950408889634
import struct
def f2u(x): return struct.unpack("<I", struct.pack("<f", x))[0]

ACC = 0
XF = 128; A0 = 136; AW = 144; AX = 152; DX = 156; DW = 160
SX = 162; SXX = 163; CS = 164; T = 165
DK = 171; DV = 173; VST = 174; LANE = 175
AK = 176; AV = 184
NV = 188
NEGM = 128; PP = 144; LS = 162; LC = 163
AF = 0
QF = 32
NA = 64
sX, sW, sK, sV, sO, sH, sRS, sRD = 8, 12, 16, 20, 24, 28, 32, 36
sWV, sH_, sR_, sPITCH32, sWOFF, sXOFF, sMASK = 40, 41, 42, 43, 44, 45, 46
sM0W, sM0X, sM0K, sKOFF, sVOFF = 47, 48, 49, 50, 51
sHO = 52
sRO = 56
sOO = 60
sT = 64
sTHR = 4
KARG = 80

def vr(b, n): return f"v[{b}:{b+n-1}]"
def ar(b, n): return f"a[{b}:{b+n-1}]"
def sr(b, n=4): return f"s[{b}:{b+n-1}]"

LDS_X = 65536; LDS_SP = 131072

def prologue(P, cfg):
    E = P.E
    KA = 76
    E(f"s_load_dwordx16 s[{KA}:{KA+15}], s[0:1], 0")
    E(f"s_load_dwordx8 s[{KA+16}:{KA+23}], s[0:1], 64")
    pX, pK, pV, pWQ, pWO, pWG, pWU, pWD, pWS = KA, KA+2, KA+4, KA+6, KA+8, KA+12, KA+14, KA+16, KA+22
    E("s_cmp_ge_u32 s2, 256")
    E("s_cbranch_scc1 L_k1_end")
    E(f"v_lshrrev_b32 v1, 6, v0")
    E(f"v_and_b32 v{LANE}, 63, v0")
    E(f"v_readfirstlane_b32 s{sWV}, v1")
    E(f"s_and_b32 s{sT}, s2, 7"); E(f"s_lshl_b32 s{sT}, s{sT}, 2")
    E(f"s_bfe_u32 s{sT+1}, s2, 0x20003"); E(f"s_add_u32 s{sH_}, s{sT}, s{sT+1}")
    E(f"s_lshr_b32 s{sR_}, s2, 5")
    E(f"s_mov_b32 s{sMASK}, 0xffff0000")
    L = LANE
    E(f"v_lshrrev_b32 v1, 3, v{L}")
    E(f"v_mul_u32_u24 v2, 1280, v1")
    E(f"v_lshrrev_b32 v3, 4, v{L}")
    E(f"v_and_b32 v4, 7, v{L}")
    E(f"v_xor_b32 v5, v4, v3")
    E(f"v_lshl_add_u32 v{DX}, v5, 4, v2")
    E(f"v_xor_b32 v{DX+1}, 64, v{DX}")
    E(f"v_add_u32 v{DX+1}, {10240-1024}, v{DX+1}")
    E(f"v_add_u32 v{DX+2}, {2*(10240-1024)}, v{DX}")
    E(f"v_add_u32 v{DX+3}, {2*(10240-1024)}, v{DX+1}")
    w = sWV
    E(f"s_movk_i32 s{sT}, 3456")
    E(f"s_cmp_lt_u32 s{w}, 4")
    E(f"s_cselect_b32 s{sT}, 8192, s{sT}")
    E(f"s_cselect_b32 s{sT+1}, 2, 1")
    E(f"s_lshl_b32 s{sPITCH32}, s{sT}, 5")
    E(f"s_cmp_ge_u32 s{w}, 6")
    E(f"s_cselect_b32 s{sT+2}, 4, 0")
    E(f"s_and_b32 s{sT+3}, s{w}, 1"); E(f"s_lshl_b32 s{sT+3}, s{sT+3}, 4")
    E(f"v_add_u32 v6, s{sT+3}, v1")
    E(f"v_mul_lo_u32 v6, v6, s{sT}")
    E(f"v_and_b32 v7, 1, v3")
    E(f"v_lshlrev_b32 v7, s{sT+1}, v7")
    E(f"v_add_u32 v7, s{sT+2}, v7")
    E(f"v_xor_b32 v7, v7, v4")
    E(f"v_lshl_add_u32 v{DW}, v7, 4, v6")
    E(f"s_lshl_b32 s{sT+4}, s{sT}, 3"); E(f"s_sub_u32 s{sT+4}, s{sT+4}, 1024")
    E(f"v_add_u32 v{DW+1}, s{sT+4}, v{DW}")
    E(f"s_lshl_b32 s{sM0W}, s{w}, 11")
    E(f"s_lshl_b32 s{sM0X}, s{w}, 12"); E(f"s_add_u32 s{sM0X}, s{sM0X}, {LDS_X}")
    P.force_wait("lgkmcnt(0)")
    E(f"s_lshl_b32 s{sT+5}, s{sR_}, 3"); E(f"s_add_u32 s{sT+5}, s{sT+5}, s{w}")
    E(f"s_mul_i32 s{sT+5}, s{sT+5}, {32*1280}")
    E(f"s_add_u32 s{sX}, s{pX}, s{sT+5}"); E(f"s_addc_u32 s{sX+1}, s{pX+1}, 0")
    E(f"s_mov_b32 s{sX+2}, {32*1280}"); E(f"s_mov_b32 s{sX+3}, 0x20000")
    E(f"s_cmp_ge_u32 s{w}, 6")
    E(f"s_cselect_b32 s{sT+6}, s{pWU}, s{pWG}"); E(f"s_cselect_b32 s{sT+7}, s{pWU+1}, s{pWG+1}")
    E(f"s_lshl_b32 s{sT+8}, s{sH_}, 7")
    E(f"s_sub_u32 s{sT+9}, {640*3456}, s{sT+8}")
    E(f"s_cmp_lt_u32 s{sH_}, 27")
    E(f"s_cselect_b32 s{sT+9}, s{sT+9}, 0")
    E(f"s_cselect_b32 s{sT+8}, s{sT+8}, 0")
    E(f"s_lshl_b32 s{sT+10}, s{sH_}, 8"); E(f"s_lshr_b32 s{sT+11}, s{w}, 1"); E(f"s_lshl_b32 s{sT+11}, s{sT+11}, 7")
    E(f"s_add_u32 s{sT+10}, s{sT+10}, s{sT+11}")
    E(f"s_sub_u32 s{sT+11}, {640*8192}, s{sT+10}")
    E(f"s_cmp_lt_u32 s{w}, 4")
    E(f"s_cselect_b32 s{sT+6}, s{pWQ}, s{sT+6}"); E(f"s_cselect_b32 s{sT+7}, s{pWQ+1}, s{sT+7}")
    E(f"s_cselect_b32 s{sT+8}, s{sT+10}, s{sT+8}"); E(f"s_cselect_b32 s{sW+2}, s{sT+11}, s{sT+9}")
    E(f"s_add_u32 s{sW}, s{sT+6}, s{sT+8}"); E(f"s_addc_u32 s{sW+1}, s{sT+7}, 0")
    E(f"s_mov_b32 s{sW+3}, 0x20000")
    E(f"s_mov_b32 s{sWOFF}, 0"); E(f"s_mov_b32 s{sXOFF}, 0")
    for x in dma_w(0): emit(P, x)
    for x in dma_x(0): emit(P, x)
    for x in dma_w(1): emit(P, x)
    for x in dma_w(2): emit(P, x)
    for x in dma_x(1): emit(P, x)
    for x in dma_w(3): emit(P, x)
    E(f"v_bfe_u32 v8, v{L}, 2, 2")
    E(f"v_and_b32 v9, 3, v{L}")
    E(f"v_lshrrev_b32 v10, 5, v{L}")
    E(f"v_and_b32 v11, 31, v{L}")
    E(f"v_and_b32 v12, 1, v3")
    E(f"v_lshrrev_b32 v13, 1, v8")
    E(f"v_lshl_add_u32 v14, v10, 3, v8")
    E(f"v_lshlrev_b32 v14, 7, v14")
    E(f"v_lshl_add_u32 v15, v13, 6, v14")
    E(f"v_lshl_add_u32 v15, v12, 5, v15")
    E(f"v_and_b32 v16, 1, v9"); E(f"v_lshl_add_u32 v15, v16, 4, v15")
    E(f"v_lshrrev_b32 v17, 1, v9"); E(f"v_lshl_add_u32 v15, v17, 3, v15")
    E(f"v_mul_u32_u24 v18, {4096+64}, v12")
    E(f"v_add3_u32 v18, v18, v14, 0")
    E(f"v_lshl_add_u32 v18, v13, 5, v18")
    E(f"v_lshl_add_u32 v18, v9, 3, v18")
    E(f"v_add_u32 v18, 8192, v18")
    E(f"s_and_b32 s{sT}, s{w}, 3")
    for j in range(4):
        E(f"s_xor_b32 s{sT+1}, s{sT}, {j}")
        E(f"s_and_b32 s{sT+2}, s{sT+1}, 1"); E(f"s_lshl_b32 s{sT+2}, s{sT+2}, 6")
        E(f"s_lshr_b32 s{sT+3}, s{sT+1}, 1"); E(f"s_lshl_b32 s{sT+3}, s{sT+3}, 12")
        E(f"s_or_b32 s{sT+2}, s{sT+2}, s{sT+3}")
        E(f"v_xor_b32 v{AW+j}, s{sT+2}, v15")
        E(f"s_lshl_b32 s{sT+3}, s{sT+1}, 5")
        E(f"v_xor_b32 v{AW+4+j}, s{sT+3}, v18")
        E(f"s_lshl_b32 s{sT+4}, s{sH_}, 1"); E(f"s_lshr_b32 s{sT+5}, s{sT+1}, 1")
        E(f"s_add_u32 s{sT+4}, s{sT+4}, s{sT+5}"); E(f"s_add_u32 s{sT+4}, s{sT+4}, 128"); E(f"s_lshl_b32 s{sT+4}, s{sT+4}, 13")
        E(f"s_and_b32 s{sT+5}, s{sT+1}, 1"); E(f"s_lshl_b32 s{sT+5}, s{sT+5}, 9")
        E(f"s_add_u32 s{sHO+j}, s{sT+4}, s{sT+5}")
        E(f"s_lshl_b32 s{sT+4}, s{sH_}, 15"); E(f"s_add_u32 s{sOO+j}, s{sT+4}, {j*8192}")
    E(f"s_cmp_lt_u32 s{w}, 4")
    E("s_cbranch_scc1 L_noswap")
    for j in range(4): E(f"v_swap_b32 v{AW+j}, v{AW+4+j}")
    P.label("L_noswap"); P.nop(2)
    E(f"v_bfe_u32 v19, v{L}, 1, 3"); E(f"v_xor_b32 v19, v19, v10")
    E(f"v_lshlrev_b32 v19, 4, v19"); E(f"v_lshl_add_u32 v19, v11, 7, v19")
    E(f"v_add_u32 v{AX}, s{sM0X}, v19")
    for s in range(1, 4): E(f"v_xor_b32 v{AX+s}, {32*s}, v{AX}")
    E(f"v_and_b32 v19, 15, v{L}"); E(f"v_xor_b32 v19, v19, v10"); E(f"v_lshlrev_b32 v19, 4, v19")
    E(f"v_lshl_add_u32 v19, v11, 8, v19")
    E(f"s_lshl_b32 s{sT+1}, s{sT}, 6"); E(f"s_add_u32 s{sT+1}, s{sT+1}, {LDS_SP}")
    E(f"v_xor_b32 v{AK}, s{sT+1}, v19")
    for s in range(1, 8): E(f"v_xor_b32 v{AK+s}, {32*s}, v{AK}")
    E(f"v_lshl_add_u32 v19, v10, 2, v8"); E(f"v_lshlrev_b32 v19, 8, v19")
    E(f"v_lshl_add_u32 v19, v8, 6, v19"); E(f"v_lshl_add_u32 v19, v12, 5, v19"); E(f"v_lshl_add_u32 v19, v9, 3, v19")
    E(f"v_add_u32 v{AV}, {LDS_SP+16384}, v19")
    for d in range(1, 4): E(f"v_xor_b32 v{AV+d}, {64*d}, v{AV}")
    E(f"s_lshl_b32 s{sM0K}, s{w}, 11")
    E(f"v_and_b32 v19, 15, v{L}")
    E(f"v_lshl_add_u32 v20, v3, 8, s{sM0K}")
    E(f"s_and_b32 s{sT+2}, s{w}, 1"); E(f"s_lshl_b32 s{sT+2}, s{sT+2}, 3")
    E(f"v_add_u32 v21, s{sT+2}, v3"); E(f"v_xor_b32 v21, v21, v19")
    E(f"v_lshl_add_u32 v{DK}, v21, 4, v20")
    E(f"v_xor_b32 v{DK+1}, 64, v{DK}")
    E(f"v_lshlrev_b32 v21, 2, v3"); E(f"v_xor_b32 v21, v21, v19")
    E(f"v_lshl_add_u32 v{DV}, v21, 4, v20")
    E(f"v_lshl_add_u32 v21, v10, 4, v19"); E(f"v_lshlrev_b32 v21, 4, v21")
    E(f"v_lshl_add_u32 v{VST}, v12, 10, v21")
    E(f"v_lshlrev_b32 v21, 4, v10"); E(f"v_lshl_add_u32 v21, v12, 2, v21"); E(f"v_add_u32 v21, v21, v8")
    E(f"v_lshlrev_b32 v21, 7, v21")
    E(f"v_lshl_add_u32 v22, v12, 1, v13"); E(f"v_xor_b32 v22, v22, v9")
    E(f"v_lshl_add_u32 v21, v22, 4, v21")
    E(f"s_lshl_b32 s{sT+2}, s{w}, 12"); E(f"s_add_u32 s{sT+2}, s{sT+2}, {LDS_SP}")
    E(f"v_add_u32 v{T+5}, s{sT+2}, v21")
    E(f"s_lshl_b32 s{sT+2}, s{sH_}, 19"); E(f"s_add_u32 s{sT+2}, s{sT+2}, {1536*256}")
    for (sd, pp) in ((sK, pK), (sV, pV)):
        E(f"s_add_u32 s{sd}, s{pp}, s{sT+2}"); E(f"s_addc_u32 s{sd+1}, s{pp+1}, 0")
        E(f"s_mov_b32 s{sd+2}, {512*256}"); E(f"s_mov_b32 s{sd+3}, 0x20000")
    E(f"s_mov_b32 s{sKOFF}, 0"); E(f"s_mov_b32 s{sVOFF}, 0")
    E(f"s_lshl_b32 s{sT+2}, s{sR_}, 1"); E(f"s_lshr_b32 s{sT+3}, s{w}, 2"); E(f"s_add_u32 s{sT+2}, s{sT+2}, s{sT+3}")
    E(f"s_mul_i32 s{sT+2}, s{sT+2}, {NU*8192}")
    E(f"s_and_b32 s{sT+3}, s{w}, 3"); E(f"s_lshl_b32 s{sT+3}, s{sT+3}, 11"); E(f"s_add_u32 s{sT+2}, s{sT+2}, s{sT+3}")
    E(f"s_add_u32 s{sO}, s{pWS}, s{sT+2}"); E(f"s_addc_u32 s{sO+1}, s{pWS+1}, 0")
    E(f"s_mov_b32 s{sO+2}, {NU*8192}"); E(f"s_mov_b32 s{sO+3}, 0x20000")
    E(f"s_mov_b32 s{sH}, s{sO}"); E(f"s_mov_b32 s{sH+1}, s{sO+1}"); E(f"s_mov_b32 s{sH+3}, 0x20000")
    E(f"s_cmp_lt_u32 s{sH_}, 27"); E(f"s_cselect_b32 s{sH+2}, {NU*8192}, 0")
    E(f"s_lshl_b32 s{sT+2}, s2, 3"); E(f"s_add_u32 s{sT+2}, s{sT+2}, s{w}")
    E(f"s_mul_i32 s{sT+3}, s{sT+2}, 6554"); E(f"s_lshr_b32 s{sT+3}, s{sT+3}, 16")
    E(f"s_mul_i32 s{sT+4}, s{sT+3}, 10"); E(f"s_sub_u32 s{sT+4}, s{sT+2}, s{sT+4}")
    E(f"s_min_u32 s{sT+3}, s{sT+3}, {NU-1}")
    E(f"s_sub_u32 s{sT+5}, s{sT+3}, 128")
    E(f"s_cmp_lt_u32 s{sT+3}, 128")
    E(f"s_cselect_b32 s{sT+5}, s{sT+3}, s{sT+5}")
    E(f"s_cselect_b32 s{sT+6}, s{pWO}, s{pWD}"); E(f"s_cselect_b32 s{sT+7}, s{pWO+1}, s{pWD+1}")
    E(f"s_mul_i32 s{sT+5}, s{sT+5}, {32*1280}"); E(f"s_lshl_b32 s{sT+8}, s{sT+4}, 7"); E(f"s_add_u32 s{sT+5}, s{sT+5}, s{sT+8}")
    E(f"s_add_u32 s{sRS}, s{sT+6}, s{sT+5}"); E(f"s_addc_u32 s{sRS+1}, s{sT+7}, 0")
    E(f"s_sub_u32 s{sT+8}, {32*1280}, s{sT+8}")
    E(f"s_cmp_lt_u32 s{sT+2}, {NU*10}")
    E(f"s_cselect_b32 s{sRS+2}, s{sT+8}, 0"); E(f"s_mov_b32 s{sRS+3}, 0x20000")
    E(f"s_cselect_b32 s{sRD+2}, {8*NU*5*1024}, 0"); E(f"s_mov_b32 s{sRD+3}, 0x20000")
    E(f"s_add_u32 s{sRD}, s{pWS}, {WT_OFF}"); E(f"s_addc_u32 s{sRD+1}, s{pWS+1}, 0")
    for gl in range(2):
        E(f"s_lshl_b32 s{sT+5}, s{sT+4}, 1"); E(f"s_add_u32 s{sT+5}, s{sT+5}, {gl}")
        E(f"s_mul_i32 s{sT+6}, s{sT+5}, 52"); E(f"s_lshr_b32 s{sT+6}, s{sT+6}, 8")
        E(f"s_mul_i32 s{sT+7}, s{sT+6}, 5"); E(f"s_sub_u32 s{sT+7}, s{sT+5}, s{sT+7}")
        E(f"s_mul_i32 s{sT+6}, s{sT+6}, {NU}"); E(f"s_add_u32 s{sT+6}, s{sT+6}, s{sT+3}")
        E(f"s_mul_i32 s{sT+6}, s{sT+6}, 10")
        E(f"s_lshr_b32 s{sT+8}, s{sT+7}, 1"); E(f"s_lshl_b32 s{sT+9}, s{sT+7}, 1"); E(f"s_add_u32 s{sT+8}, s{sT+8}, s{sT+9}")
        E(f"s_cmp_lt_u32 s{sT+7}, 4")
        E(f"s_cselect_b32 s{sT+8}, s{sT+8}, 4"); E(f"s_cselect_b32 s{sT+9}, 1, 5")
        E(f"s_add_u32 s{sT+6}, s{sT+6}, s{sT+8}"); E(f"s_lshl_b32 s{sRO+2*gl}, s{sT+6}, 10")
        E(f"s_add_u32 s{sT+6}, s{sT+6}, s{sT+9}"); E(f"s_lshl_b32 s{sRO+2*gl+1}, s{sT+6}, 10")
    E(f"s_add_u32 s{sT+8}, s{pWS}, {48<<20}"); E(f"s_addc_u32 s{sT+9}, s{pWS+1}, 0")
    E(f"s_mov_b32 s{sT+10}, 8192"); E(f"s_mov_b32 s{sT+11}, 0x20000")
    E(f"s_lshl_b32 s{sT+5}, s2, 5")
    E(f"v_lshlrev_b32 v21, 2, v4"); E(f"v_mov_b32 v22, 0")
    E(f"buffer_store_dword v22, v21, {sr(sT+8)}, s{sT+5} offen")
    for r in (SX, SXX, CS): E(f"v_mov_b32 v{r}, 0")

def dma_w(s):
    slot = (s % 4) * 16384
    return [f"s_add_u32 m0, s{sM0W}, {slot}",
            (f"buffer_load_dwordx4 v{DW}, {sr(sW)}, s{sWOFF} offen lds", f"W{s}"),
            (f"buffer_load_dwordx4 v{DW+1}, {sr(sW)}, s{sWOFF} offen offset:1024 lds", f"W{s}"),
            f"s_add_u32 s{sWOFF}, s{sWOFF}, s{sPITCH32}"]
def dma_x(xs):
    return [f"s_add_u32 m0, s{sM0X}, {(xs % 2) * 32768}"] + \
           [(f"buffer_load_dwordx4 v{DX+i}, {sr(sX)}, s{sXOFF} offen offset:{1024*i} lds", f"X{xs}") for i in range(4)] + \
           [f"s_add_u32 s{sXOFF}, s{sXOFF}, 128"]
def kslot(c): return LDS_SP if c == 0 else ((c - 1) % 4) * 16384
def vslot(c): return LDS_SP + 16384 if c == 0 else LDS_X + ((c - 1) % 4) * 16384
def dma_k(c):
    return [f"s_add_u32 m0, s{sM0K}, {kslot(c)}",
            (f"buffer_load_dwordx4 v{DK}, {sr(sK)}, s{sKOFF} offen lds", f"K{c}"),
            (f"buffer_load_dwordx4 v{DK+1}, {sr(sK)}, s{sKOFF} offen offset:1024 lds", f"K{c}"),
            f"s_add_u32 s{sKOFF}, s{sKOFF}, 16384"]
def dma_v(c):
    return [f"s_add_u32 m0, s{sM0K}, {vslot(c)}",
            (f"buffer_load_dwordx4 v{DV}, {sr(sV)}, s{sVOFF} offen lds", f"V{c}"),
            (f"buffer_load_dwordx4 v{DV}, {sr(sV)}, s{sVOFF} offen offset:1024 lds", f"V{c}"),
            f"s_add_u32 s{sVOFF}, s{sVOFF}, 16384"]

def afrag(j, n):
    if j == 0:
        b = A0 + 4 * (n % 2); return vr(b, 4), vr(b, 2), vr(b + 2, 2)
    b = AF + 4 * j; return ar(b, 4), ar(b, 2), ar(b + 2, 2)
def rd_a(j, n):
    s = n // 2; off = (s % 4) * 16384 + (n % 2) * 16 * 128
    _, lo, hi = afrag(j, n)
    return [f"ds_read_b64_tr_b16 {lo}, v{AW+j} offset:{off}", f"ds_read_b64_tr_b16 {hi}, v{AW+j} offset:{off+512}"]
def rd_x(n):
    xs = n // 4
    return [f"ds_read_b128 {vr(XF+4*(n%2),4)}, v{AX+n%4} offset:{(xs%2)*32768}"]

def stats(n):
    L = []
    xb = XF + 4 * (n % 2); ab = A0 + 4 * (n % 2)
    for i in range(4):
        L += [f"v_lshlrev_b32 v{T}, 16, v{xb+i}", f"v_and_b32 v{T+1}, s{sMASK}, v{xb+i}",
              f"v_add_f32 v{SX}, v{SX}, v{T}", f"v_fmac_f32 v{SXX}, v{T}, v{T}",
              f"v_add_f32 v{SX}, v{SX}, v{T+1}", f"v_fmac_f32 v{SXX}, v{T+1}, v{T+1}",
              f"v_lshlrev_b32 v{T+2}, 16, v{ab+i}", f"v_and_b32 v{T+3}, s{sMASK}, v{ab+i}",
              f"v_add_f32 v{CS}, v{CS}, v{T+2}", f"v_add_f32 v{CS}, v{CS}, v{T+3}"]
    return L

def phase1(P, cfg):
    E = P.E
    P.wait_vm_tag("X0")
    E("s_barrier")
    P.stamp()
    for x in rd_x(0) + sum((rd_a(j, 0) for j in range(8)), []): E(x)
    for n in range(40):
        s = n // 2
        mf = []
        for j in range(8):
            c = vr(ACC + 16 * j, 16) if n > 0 else "0"
            mf.append(f"v_mfma_f32_32x32x16_bf16 {vr(ACC+16*j,16)}, {afrag(j,n)[0]}, {vr(XF+4*(n%2),4)}, {c}")
        fill = [[] for _ in range(8)]
        pre = []
        if n % 2 == 1 and s + 1 < 20:
            P.wait_vm_tag(f"W{s+1}")
            E("s_barrier")
            if s >= 1:
                if s + 3 < 20: fill[1] += dma_w(s + 3)
                else: fill[1] += dma_k(s + 3 - 19)
            if s == 18: fill[3] += dma_v(1)
        if n + 1 < 40:
            if n % 4 == 3: fill[0].append(lambda t=f"X{(n+1)//4}": P.wait_vm_tag(t))
            fill[0] += rd_x(n + 1) + rd_a(0, n + 1)
            for j in range(1, 8): fill[j] = rd_a(j, n + 1) + fill[j]
        if n % 4 == 3 and n // 4 + 2 < 10: fill[4] += dma_x(n // 4 + 2)
        RL = cfg.get("rl", 8)
        if n == RL:
            fill[5] += [f"s_add_u32 m0, s{sM0X}, {LDS_SP-LDS_X}"] + \
                [(f"buffer_load_dwordx4 v{DX+i}, {sr(sRS)}, 0 offen offset:{1024*i} lds", "RL") for i in range(4)]
        if n == RL + 8:
            fill[2].append(lambda: P.wait_vm_tag("RL"))
            for x in range(4):
                gl, p = x // 2, x % 2
                fill[2 + x] += [f"ds_read_b64_tr_b16 {ar(QF+4*x+2*e,2)}, v{T+5} offset:{1024*e+64*(gl^e)+8*p}" for e in range(2)]
        if n == RL + 10:
            fill[2].append(f"v_lshlrev_b32 v{T+4}, 4, v{LANE}")
            for b in range(4):
                fill[3 + b].append(f"buffer_store_dwordx4 {ar(QF+4*b,4)}, v{T+4}, {sr(sRD)}, s{sRO+b} offen{cfg.get('stflag','')}")
        if n == RL + 13:
            fill[5] += dma_k(0); fill[6] += dma_v(0)
        if not cfg.get("nostats"):
            fill = merge(fill, spread(stats(n), 8))
        weave(P, mf, fill)
        if n in (9, 19, 29): P.stamp()
```

```python
from k1 import *

def bf16_round(E, dst, src):
    E(f"v_cvt_pk_bf16_f32 v{dst}, v{src}, v{src}")
    E(f"v_and_b32 v{dst}, s{sMASK}, v{dst}")

def epilogue_common(P, cfg):
    E = P.E
    a, b, c = T + 1, T + 2, T + 3
    bf16_round(E, a, CS)
    E(f"v_sub_f32 v{b}, v{CS}, v{a}")
    bf16_round(E, c, b)
    E(f"v_sub_f32 v{T+4}, v{b}, v{c}")
    E(f"v_cvt_pk_bf16_f32 v{A0}, v{a}, v{c}")
    E(f"v_cvt_pk_bf16_f32 v{A0+1}, v{T+4}, 0")
    E(f"v_lshlrev_b32 v{T+4}, 3, v{LANE}")
    E(f"v_add_u32 v{T+5}, s{sM0X}, v{T+4}")
    E(f"ds_write_b64 v{T+5}, {vr(A0,2)} offset:32768")
    E(f"v_mov_b32 v{a}, v{SX}"); E(f"v_mov_b32 v{b}, v{SXX}")
    E(f"v_permlane32_swap_b32 v{a}, v{SX}"); E(f"v_permlane32_swap_b32 v{b}, v{SXX}")
    E(f"v_add_f32 v{SX}, v{SX}, v{a}"); E(f"v_add_f32 v{SXX}, v{SXX}, v{b}")
    E(f"v_mul_f32 v{SX}, {hex(f2u(1/640))}, v{SX}")
    E(f"v_mul_f32 v{SXX}, {hex(f2u(1/640))}, v{SXX}")
    E(f"v_fma_f32 v{SXX}, -v{SX}, v{SX}, v{SXX}")
    E(f"v_max_f32 v{SXX}, 0, v{SXX}")
    P.wait_all(vm=False)
    P.wait_vm_tag("K0")
    E("s_barrier")
    for j in range(8):
        E(f"s_xor_b32 s{sT}, s{sWV}, {j}"); E(f"s_lshl_b32 s{sT}, s{sT}, 12"); E(f"s_add_u32 s{sT}, s{sT}, {LDS_X}")
        E(f"v_add_u32 v{AW+j}, s{sT}, v{T+4}")
        E(f"ds_read_b64 {ar(AF+4*j,2)}, v{AW+j} offset:32768")
    for x in dma_k(3) + dma_v(2) + dma_k(4): emit(P, x)
    E(f"v_cvt_pk_bf16_f32 v{XF}, -v{SX}, -v{SX}")
    E(f"v_mov_b32 v{XF+1}, v{XF}"); E(f"v_mov_b32 v{XF+2}, 0"); E(f"v_mov_b32 v{XF+3}, 0")
    E(f"v_accvgpr_write_b32 a{AF+2}, 0"); E(f"v_accvgpr_write_b32 a{AF+3}, 0")
    bf16_round(E, a, SXX)
    E(f"v_add_f32 v{a}, {hex(f2u(1e-5))}, v{a}")
    bf16_round(E, a, a)
    E(f"v_sqrt_f32 v{a}, v{a}")
    bf16_round(E, a, a)
    E(f"v_rcp_f32 v{T}, v{a}")

def corr_mfma(j):
    return f"v_mfma_f32_32x32x16_bf16 {vr(ACC+16*j,16)}, {ar(AF+4*j,4)}, {vr(XF,4)}, {vr(ACC+16*j,16)}"

def q_epi(QA):
    L = [f"v_mul_f32 v{T+1}, {hex(f2u(LOG2E * 128 ** -0.5))}, v{T}"]
    for i in range(0, 64, 2):
        t = T + 2 + (i // 2) % 2 * 2
        L += [f"v_mul_f32 v{t}, v{T+1}, v{QA+i}", f"v_mul_f32 v{t+1}, v{T+1}, v{QA+i+1}",
              f"v_cvt_pk_bf16_f32 v{t}, v{t}, v{t+1}", f"v_accvgpr_write_b32 a{QF+i//2}, v{t}"]
    return L

def f_epi(FA, cfg, c1, c2, tmp):
    L = [f"v_mul_f32 v{c1}, {hex(f2u(-LOG2E))}, v{T}", f"v_mul_f32 v{c2}, v{T}, v{T}"]
    for j in range(4):
        b = FA + 16 * j
        for r in range(0, 8, 2):
            t0, t1 = tmp[0], tmp[1]
            L += [f"v_mul_f32 v{t0}, v{c1}, v{b+r}", f"v_mul_f32 v{t1}, v{c1}, v{b+r+1}",
                  f"v_exp_f32 v{t0}, v{t0}", f"v_exp_f32 v{t1}, v{t1}",
                  f"v_mul_f32 v{b+r}, v{b+r}, v{b+8+r}", f"v_mul_f32 v{b+r+1}, v{b+r+1}, v{b+9+r}",
                  f"v_add_f32 v{t0}, 1.0, v{t0}", f"v_add_f32 v{t1}, 1.0, v{t1}",
                  f"v_rcp_f32 v{t0}, v{t0}", f"v_rcp_f32 v{t1}, v{t1}",
                  f"v_mul_f32 v{b+r}, v{c2}, v{b+r}", f"v_mul_f32 v{b+r+1}, v{c2}, v{b+r+1}",
                  f"v_mul_f32 v{t0}, v{t0}, v{b+r}", f"v_mul_f32 v{t1}, v{t1}, v{b+r+1}",
                  f"v_cvt_pk_bf16_f32 v{b+8+r//2}, v{t0}, v{t1}"]
        L.append(f"buffer_store_dwordx4 {vr(b+8,4)}, v{VST}, {sr(sH)}, s{sHO+j} offen{cfg.get('stflag','')}")
    return L

def kaddr_off(c): return 0 if c == 0 else kslot(c)
def vaddr_off(c): return 0 if c == 0 else vslot(c) - LDS_X
class Seq:
    pass

def attn_items(S, O):
    ops = []
    def qk(c):
        Sb = S[c % 2]
        for i in range(16):
            kt, s = i % 2, i // 2
            d = vr(Sb + 16 * kt, 16)
            cc = d if s > 0 else ("0" if c == 0 else vr(NEGM, 16))
            ops.append(("QK", c, i,
                        lambda f, d=d, cc=cc, s=s: f"v_mfma_f32_32x32x16_bf16 {d}, {ar(f,4)}, {ar(QF+4*s,4)}, {cc}",
                        lambda f, s=s, kt=kt, c=c: [f"ds_read_b128 {ar(f,4)}, v{AK+s} offset:{kaddr_off(c)+8192*kt}"]))
    def pv(c):
        for i in range(16):
            u, dt = i // 4, i % 4
            d = vr(O + 16 * dt, 16)
            cc = d if (c > 0 or u > 0) else "0"
            ops.append(("PV", c, i,
                        lambda f, d=d, cc=cc, u=u: f"v_mfma_f32_32x32x16_bf16 {d}, {ar(f,4)}, {vr(PP+4*u,4)}, {cc}",
                        lambda f, u=u, dt=dt, c=c: [f"ds_read_b64_tr_b16 {ar(f,2)}, v{AV+dt} offset:{vaddr_off(c)+4096*u}",
                                                    f"ds_read_b64_tr_b16 {ar(f+2,2)}, v{AV+dt} offset:{vaddr_off(c)+4096*u+2048}"]))
    qk(0)
    for c in range(8):
        if c < 7: qk(c + 1)
        pv(c)
    return ops

def softmax(Sb, first):
    L = []; W = []
    for i in range(0, 32, 2):
        t = T + (i // 2) % 2 * 2
        L += [f"v_exp_f32 v{t}, v{Sb+i}", f"v_exp_f32 v{t+1}, v{Sb+i+1}"]; W += [2, 2]
        if i == 0: L += [f"v_add_f32 v{LC}, v{t}, v{t+1}"]; W += [1]
        else: L += [f"v_add_f32 v{LC}, v{LC}, v{t}", f"v_add_f32 v{LC}, v{LC}, v{t+1}"]; W += [1, 1]
        L += [f"v_cvt_pk_bf16_f32 v{PP+i//2}, v{t}, v{t+1}"]; W += [1]
    return L, W

def rowmax(Sb, dst, tmp):
    L = [f"v_max3_f32 v{dst}, v{Sb}, v{Sb+1}, v{Sb+2}"]
    for i in range(3, 31, 2): L.append(f"v_max3_f32 v{dst}, v{dst}, v{Sb+i}, v{Sb+i+1}")
    L.append(f"v_max_f32 v{dst}, v{dst}, v{Sb+31}")
    L += [f"v_mov_b32 v{tmp}, v{dst}", f"v_permlane32_swap_b32 v{tmp}, v{dst}", f"v_max_f32 v{dst}, v{dst}, v{tmp}"]
    return L

def attention(P, g, cfg, fallbacks):
    E = P.E
    QA = 64 * g; FA = 64 * (1 - g)
    S = [QA, QA + 32]; O = FA
    qj = range(4 * g, 4 * g + 4); fj = range(4 * (1 - g), 4 * (1 - g) + 4)
    for j in list(qj) + list(fj): E(corr_mfma(j))
    ops = attn_items(S, O)
    NF = 8; LEAD = 8
    for x in q_epi(QA): E(x)
    for k in range(LEAD):
        for x in ops[k][4](AF + 4 * (k % NF)): E(x)
    for x in f_epi(FA, cfg, AW, AW + 1, (AW + 2, AW + 3)): E(x)
    k = 0
    P.stamp()
    while k < len(ops):
        ph, c, _, _, _ = ops[k]
        seg = ops[k:k + 16]
        mf = [o[3](AF + 4 * ((k + i) % NF)) for i, o in enumerate(seg)]
        fill = [[] for _ in range(16)]
        for i in range(16):
            nk = k + i + LEAD
            if nk < len(ops):
                pre = []
                nph, nc, ni = ops[nk][:3]
                if ni == 0:
                    if nph == "QK":
                        pre.append(lambda nc=nc: (P.wait_vm_tag(f"K{nc}"), P.wait_vm_tag(f"V{nc-1}"), E("s_barrier")))
                        if nc == 1: pre += [f"v_subrev_u32 v{AK+s}, {LDS_SP}, v{AK+s}" for s in range(8)]
                        post = []
                        if nc >= 2 and nc + 3 < 8: post += dma_k(nc + 3)
                        if nc == 1: post += dma_v(3) + dma_v(4)
                        if nc >= 4 and nc + 1 < 8: post += dma_v(nc + 1)
                        if i + 1 < 16: fill[i + 1] += post
                        else: raise ValueError
                    elif nc == 7:
                        pre.append(lambda: (P.wait_vm_tag("V7"), E("s_barrier")))
                    if nph == "PV" and nc == 1:
                        pre += [f"v_subrev_u32 v{AV+d}, {LDS_SP+16384-LDS_X}, v{AV+d}" for d in range(4)]
                fill[i] = pre + ops[nk][4](AF + 4 * (nk % NF)) + fill[i]
        sm_c = None
        if ph == "QK" and c >= 1:
            sm_c = c - 1
            L, W = softmax(S[sm_c % 2], False)
            fill = merge(fill, spread(L, 16, W))
        if ph == "PV" and c == 7:
            sm_c = 7
            L, W = softmax(S[1], False)
            for x in L: E(x)
            check(P, g, 7, S, O, fallbacks)
            sm_c = None
        weave(P, mf, fill)
        if ph == "QK" and c == 0:
            for x in rowmax(S[0], T + 4, T + 5): E(x)
            for i in range(16): E(f"v_sub_f32 v{NEGM+i}, 0, v{T+4}")
            for i in range(32): E(f"v_sub_f32 v{S[0]+i}, v{S[0]+i}, v{T+4}")
            E(f"v_mov_b32 v{LS}, 0")
        if sm_c is not None: check(P, g, sm_c, S, O, fallbacks)
        k += 16
        if (ph, c) in (("QK", 0), ("PV", 3), ("PV", 7)): P.stamp()
    E(f"v_mov_b32 v{T}, v{LS}"); E(f"v_permlane32_swap_b32 v{T}, v{LS}"); E(f"v_add_f32 v{LS}, v{LS}, v{T}")
    E(f"v_rcp_f32 v{LS}, v{LS}")
    for dt in range(4):
        b = O + 16 * dt
        for i in range(16): E(f"v_mul_f32 v{b+i}, v{LS}, v{b+i}")
        for i in range(8): E(f"v_cvt_pk_bf16_f32 v{S[0]+8*dt+i}, v{b+2*i}, v{b+2*i+1}")
        for uu in range(2):
            E(f"buffer_store_dwordx4 {vr(S[0]+8*dt+4*uu,4)}, v{VST}, {sr(sO)}, s{sOO+dt} offen offset:{512*uu}{cfg.get('stflag','')}")
    P.stamp_flush(0, 98, sWV, sX, T, T + 1)
    E("s_endpgm")

def check(P, g, c, S, O, fallbacks):
    E = P.E
    if c > 0:
        E(f"v_cmp_nle_f32 vcc, v{LC}, s{sTHR}")
        E(f"s_cbranch_vccnz L_fb_{g}_{c}")
        P.label(f"L_ret_{g}_{c}")
        fallbacks.append((g, c, S, O))
    E(f"v_add_f32 v{LS}, v{LS}, v{LC}")

def fallback(P, g, c, S, O):
    P.lg = []; P.vm = []; P.hist = []
    E = P.E
    P.label(f"L_fb_{g}_{c}")
    P.nop(16)
    Sb = S[c % 2]; Sn = S[(c + 1) % 2]
    for x in rowmax(Sb, T + 4, T + 5): E(x)
    E(f"v_max_f32 v{T+4}, 0, v{T+4}")
    E(f"v_exp_f32 v{T+5}, -v{T+4}")
    for i in range(16): E(f"v_sub_f32 v{NEGM+i}, v{NEGM+i}, v{T+4}")
    for i in range(32): E(f"v_sub_f32 v{Sb+i}, v{Sb+i}, v{T+4}")
    if c < 7:
        for i in range(32): E(f"v_sub_f32 v{Sn+i}, v{Sn+i}, v{T+4}")
    for i in range(64): E(f"v_mul_f32 v{O+i}, v{T+5}, v{O+i}")
    E(f"v_mul_f32 v{LS}, v{T+5}, v{LS}")
    for x in softmax(Sb, False)[0]: E(x)
    P.nop(4)
    E(f"s_branch L_ret_{g}_{c}")

def gen_k1(name, cfg):
    P = Prog()
    P.raw(f".globl {name}\n.p2align 8\n.type {name},@function\n{name}:")
    if cfg.get("ts"):
        P.ts = {"n": 0, "regs": [100] + list(range(76, 98, 2))}
        P.stamp(); P.stamp(True)
    prologue(P, cfg)
    P.E(f"s_mov_b32 s{sTHR}, {hex(f2u(2.0**30))}")
    phase1(P, cfg)
    P.stamp()
    epilogue_common(P, cfg)
    P.E(f"s_cmp_ge_u32 s{sWV}, 4")
    P.E("s_cbranch_scc1 L_grpB")
    st = P.state()
    fb = []
    attention(P, 0, cfg, fb)
    P.label("L_grpB")
    P.set_state(st)
    attention(P, 1, cfg, fb)
    for f in fb: fallback(P, *f)
    P.label("L_k1_end")
    P.raw("  s_endpgm")
    desc = f""".amdhsa_kernel {name}
  .amdhsa_next_free_vgpr {NV+NA}
  .amdhsa_next_free_sgpr 102
  .amdhsa_accum_offset {NV}
  .amdhsa_group_segment_fixed_size 0
  .amdhsa_kernarg_size 96
  .amdhsa_user_sgpr_count 2
  .amdhsa_user_sgpr_kernarg_segment_ptr 1
  .amdhsa_system_sgpr_workgroup_id_x 1
.end_amdhsa_kernel
"""
    return P, desc
```

```python
from k1 import *

SLAB_OFF = 64 << 20
FLAG_OFF = 48 << 20
SLAB_PH = 64 * 16 * 10240
NST = 23
SLOT = 36864

class R3:
    pass

def p3_map(E, sq, smt, snt, t):
    E(f"s_bfe_u32 s{sq}, s2, 0x20001")
    E(f"s_and_b32 s{t}, s2, 1"); E(f"s_lshl_b32 s{t}, s{t}, 3")
    E(f"s_bfe_u32 s{smt}, s2, 0x30003"); E(f"s_add_u32 s{smt}, s{smt}, s{t}")
    E(f"s_lshr_b32 s{snt}, s2, 6")

def p3_setup(P, R, pWS, pX, pOUT, lane, t, v):
    E = P.E
    w = R.sW
    p3_map(E, R.sQ, t, t + 1, t + 2)
    E(f"s_mul_i32 s{t+2}, s{t}, {NU*8192}")
    E(f"s_add_u32 s{R.sB}, s{pWS}, s{t+2}"); E(f"s_addc_u32 s{R.sB+1}, s{pWS+1}, 0")
    E(f"s_mov_b32 s{R.sB+2}, {NU*8192}"); E(f"s_mov_b32 s{R.sB+3}, 0x20000")
    E(f"s_mul_i32 s{t+2}, s{t+1}, {NU*10240}"); E(f"s_add_u32 s{t+2}, s{t+2}, {WT_OFF}")
    E(f"s_add_u32 s{R.sA}, s{pWS}, s{t+2}"); E(f"s_addc_u32 s{R.sA+1}, s{pWS+1}, 0")
    E(f"s_mov_b32 s{R.sA+2}, {NU*10240}"); E(f"s_mov_b32 s{R.sA+3}, 0x20000")
    E(f"s_mul_i32 s{t+2}, s{R.sQ}, 14"); E(f"s_min_u32 s{t+2}, s{t+2}, 40"); E(f"s_add_u32 s{t+2}, s{t+2}, 128")
    E(f"s_lshl_b32 s{R.sBo}, s{t+2}, 13"); E(f"s_mul_i32 s{R.sAo}, s{t+2}, 10240")
    E(f"v_lshlrev_b32 v{v}, 4, v{lane}")
    E(f"s_lshl_b32 s{R.sMB}, s{w}, 11")
    E(f"v_add_u32 v{R.DB}, s{R.sMB}, v{v}")
    E(f"s_and_b32 s{t+3}, s{w}, 3")
    E(f"s_mul_i32 s{R.sMH}, s{t+3}, 3072")
    E(f"s_lshl_b32 s{R.sML}, s{t+3}, 11"); E(f"s_add_u32 s{R.sML}, s{R.sML}, {12*1024}")
    E(f"v_add_u32 v{R.DH}, s{R.sMH}, v{v}"); E(f"v_add_u32 v{R.DL}, s{R.sML}, v{v}")

def p3_setup2(P, R, pWS, pX, pOUT, lane, t, v):
    E = P.E
    w = R.sW
    p3_map(E, R.sQ, t, t + 1, t + 2)
    E(f"s_and_b32 s{t+3}, s{w}, 3")
    E(f"v_lshlrev_b32 v{R.RA}, 4, v{lane}")
    E(f"v_add_u32 v{R.RA+1}, {2*SLOT}, v{R.RA}")
    E(f"s_lshl_b32 s{t+4}, s{t+3}, 11")
    E(f"v_add_u32 v{R.RB}, s{t+4}, v{R.RA}"); E(f"v_add_u32 v{R.RB+1}, s{t+4}, v{R.RA+1}")
    E(f"v_add_u32 v{R.RA}, 16384, v{R.RA}"); E(f"v_add_u32 v{R.RA+1}, 16384, v{R.RA+1}")
    E(f"s_lshl_b32 s{t+2}, s{t}, 2"); E(f"s_add_u32 s{t+2}, s{t+2}, s{t+1}")
    E(f"s_mul_i32 s{t+4}, s{t+2}, 163840"); E(f"s_mul_i32 s{t+5}, s{w}, 1280"); E(f"s_add_u32 s{t+4}, s{t+4}, s{t+5}")
    E(f"s_add_u32 s{t+4}, s{t+4}, {SLAB_OFF}")
    E(f"s_add_u32 s{R.sP}, s{pWS}, s{t+4}"); E(f"s_addc_u32 s{R.sP+1}, s{pWS+1}, 0")
    E(f"s_mov_b32 s{R.sP+2}, {SLAB_PH+163840}"); E(f"s_mov_b32 s{R.sP+3}, 0x20000")
    E(f"s_lshl_b32 s{t+2}, s{t+2}, 7"); E(f"s_add_u32 s{t+2}, s{t+2}, {FLAG_OFF}")
    E(f"s_add_u32 s{R.sF}, s{pWS}, s{t+2}"); E(f"s_addc_u32 s{R.sF+1}, s{pWS+1}, 0")
    E(f"s_mov_b32 s{R.sF+2}, 128"); E(f"s_mov_b32 s{R.sF+3}, 0x20000")
    E(f"v_and_b32 v{R.FL}, 3, v{lane}"); E(f"v_lshlrev_b32 v{R.FL}, 2, v{R.FL}")
    E(f"s_lshl_b32 s{R.sFo}, s{R.sQ}, 2")
    E(f"v_and_b32 v{v}, 7, v{lane}"); E(f"v_lshrrev_b32 v{v+1}, 4, v{lane}"); E(f"v_lshl_add_u32 v{v}, v{v+1}, 3, v{v}")
    E(f"v_bfe_u32 v{v+1}, v{lane}, 3, 1"); E(f"v_mul_u32_u24 v{v+1}, 40960, v{v+1}")
    E(f"s_mul_i32 s{t+4}, s{R.sQ}, 10240"); E(f"v_add_u32 v{v+1}, s{t+4}, v{v+1}")
    E(f"v_lshl_add_u32 v{R.WR}, v{v}, 4, v{v+1}"); E(f"v_lshl_add_u32 v{R.WR+1}, v{v}, 3, v{v+1}")
    E(f"v_and_b32 v{v}, 31, v{lane}"); E(f"v_lshrrev_b32 v{v+2}, 5, v{lane}"); E(f"v_mul_u32_u24 v{v+1}, 20480, v{v+2}")
    E(f"s_mul_i32 s{t+4}, s{R.sQ}, 40960"); E(f"v_add_u32 v{v+1}, s{t+4}, v{v+1}")
    E(f"v_lshl_add_u32 v{R.RD}, v{v}, 4, v{v+1}"); E(f"v_lshl_add_u32 v{R.RD+1}, v{v}, 3, v{v+1}")
    E(f"s_lshl_b32 s{t}, s{t}, 7"); E(f"s_lshl_b32 s{t+4}, s{t+3}, 5"); E(f"s_add_u32 s{t}, s{t}, s{t+4}")
    E(f"s_lshl_b32 s{t+4}, s{R.sQ}, 3"); E(f"s_add_u32 s{t}, s{t}, s{t+4}"); E(f"s_mul_i32 s{t}, s{t}, 1280")
    E(f"s_mul_i32 s{t+4}, s{t+1}, 320"); E(f"s_add_u32 s{t}, s{t}, s{t+4}")
    E(f"v_and_b32 v{v}, 7, v{lane}"); E(f"v_mul_u32_u24 v{v}, 1280, v{v}"); E(f"v_bfe_u32 v{v+1}, v{lane}, 3, 2")
    E(f"v_lshl_add_u32 v{v}, v{v+1}, 4, v{v}"); E(f"v_add_u32 v{v}, s{t}, v{v}")
    E(f"s_lshr_b32 s{t+4}, s{w}, 2")
    E(f"s_lshl_b32 s{t+5}, s{t+4}, 7"); E(f"v_lshl_add_u32 v{R.VO}, v{v+2}, 6, v{v}"); E(f"v_add_u32 v{R.VO}, s{t+5}, v{R.VO}")
    E(f"s_lshl_b32 s{t+5}, s{t+4}, 3"); E(f"s_add_u32 s{t+5}, s{t+5}, 256")
    E(f"v_lshl_add_u32 v{R.VO+1}, v{v+2}, 2, v{v}"); E(f"v_add_u32 v{R.VO+1}, s{t+5}, v{R.VO+1}")
    for (sd, pp) in ((R.sXO, pX), (R.sOUT, pOUT)):
        E(f"s_mov_b32 s{sd}, s{pp}"); E(f"s_mov_b32 s{sd+1}, s{pp+1}")
        E(f"s_mov_b32 s{sd+2}, {2048*1280}"); E(f"s_mov_b32 s{sd+3}, 0x20000")

def p3_dma(R, g, st, cfg):
    slot = (st % 4) * SLOT
    f = cfg.get("ldflag", "")
    L = []
    if st == 7:
        if not cfg.get("hotB"): L += [f"s_lshl_b32 s{R.sBo}, s{R.sQ}, 18"]
        if not cfg.get("hotA"): L += [f"s_mul_i32 s{R.sAo}, s{R.sQ}, {32*10240}"]
    heavy = (st % 2) == g
    L += [f"s_add_u32 m0, s{R.sMH if heavy else R.sML}, {slot+16384}"]
    L += [(f"buffer_load_dwordx4 v{R.DH if heavy else R.DL}, {sr(R.sA)}, s{R.sAo} offen offset:{1024*i} lds", f"S{st}") for i in range(3 if heavy else 2)]
    L += [f"s_add_u32 m0, s{R.sMB}, {slot}"]
    L += [(f"buffer_load_dwordx4 v{R.DB}, {sr(R.sB)}, s{R.sBo} offen offset:{1024*i}{f} lds", f"S{st}") for i in range(2)]
    ha, hb = cfg.get("hotA"), cfg.get("hotB")
    da = 20480 if not (ha and st % 4 == 3) else -3*20480
    db = 16384 if not (hb and st % 4 == 3) else -3*16384
    L += [f"s_add_u32 s{R.sAo}, s{R.sAo}, {da}", f"s_add_u32 s{R.sBo}, s{R.sBo}, {db}"]
    return L

def p3_reads(R, g, st):
    s4 = st % 4; hi = s4 // 2; base = (s4 % 2) * SLOT
    L = []
    for u in range(2):
        for mi in range(2): L.append(f"ds_read_b128 {R.fr(st%2, 7*u+mi)}, v{R.RB+hi} offset:{base+8192*u+1024*mi}")
        for ni in range(5): L.append(f"ds_read_b128 {R.fr(st%2, 7*u+2+ni)}, v{R.RA+hi} offset:{base+10240*u+5120*g+1024*ni}")
    return L

def p3_mfma(R, st):
    acc = R.ACCF if st < 7 else R.ACCS
    L = []
    for u in range(2):
        for ni in range(5):
            for mi in range(2):
                d = vr(acc + 20 * mi + 4 * ni, 4)
                first = st in (0, 7) and u == 0
                L.append(f"v_mfma_f32_16x16x32_bf16 {d}, {R.fr(st%2, 7*u+2+ni)}, {R.fr(st%2, 7*u+mi)}, {'0' if first else d}")
    return L

def p3_publish(R, acc, ph):
    L = []
    for mi in range(2):
        b = acc + 20 * mi
        for i in range(10): L.append(f"v_cvt_pk_bf16_f32 v{b+i}, v{b+2*i}, v{b+2*i+1}")
        so = f"s{R.sPo+mi}"
        L.append(f"s_mov_b32 {so}, {ph*SLAB_PH + mi*81920}")
        L += [(f"buffer_store_dwordx4 {vr(b,4)}, v{R.WR}, {sr(R.sP)}, {so} offen sc1", f"PUB{ph}"),
              (f"buffer_store_dwordx4 {vr(b+4,4)}, v{R.WR}, {sr(R.sP)}, {so} offen offset:512 sc1", f"PUB{ph}"),
              (f"buffer_store_dwordx2 {vr(b+8,2)}, v{R.WR+1}, {sr(R.sP)}, {so} offen offset:1024 sc1", f"PUB{ph}")]
    return L

def p3_flag(P, R, g, ph):
    E = P.E
    if g != 0: return
    lab = f"L_p3_nf{ph}"
    E(f"s_cmp_lg_u32 s{R.sW}, 0"); E(f"s_cbranch_scc1 {lab}")
    P.raw(f"  v_mov_b32 v{R.T}, 1"); P.raw(f"  v_mov_b32 v{R.T+1}, 0")
    P.raw(f"  s_mov_b64 exec, 1")
    P.raw(f"  buffer_store_dword v{R.T}, v{R.T+1}, {sr(R.sF)}, s{R.sFo} offen offset:{16*ph} sc1")
    P.raw(f"  s_mov_b64 exec, -1")
    P.label(lab)

def p3_poll_issue(R, ph):
    return [f"buffer_load_dword v{R.PL}, v{R.FL}, {sr(R.sF)}, 0 offen offset:{16*ph} sc1"]

def p3_poll_check(P, R, g, ph, slow):
    E = P.E
    E(f"v_cmp_ne_u32 vcc, 1, v{R.PL}")
    E(f"s_cbranch_vccnz L_p3_spin_{g}_{ph}")
    P.label(f"L_p3_ok_{g}_{ph}")
    slow.append((g, ph))

def p3_spin(P, R, g, ph):
    P.label(f"L_p3_spin_{g}_{ph}")
    P.raw(f"  s_mov_b32 s{R.sSP}, 200000")
    P.label(f"L_p3_spl_{g}_{ph}")
    P.raw(f"  s_sleep 2")
    P.raw(f"  buffer_load_dword v{R.PL}, v{R.FL}, {sr(R.sF)}, 0 offen offset:{16*ph} sc1")
    P.raw(f"  s_sub_u32 s{R.sSP}, s{R.sSP}, 1")
    P.raw(f"  s_cmp_eq_u32 s{R.sSP}, 0")
    P.raw(f"  s_cbranch_scc1 L_p3_ok_{g}_{ph}")
    P.raw(f"  s_waitcnt vmcnt(0)")
    P.raw(f"  v_cmp_ne_u32 vcc, 1, v{R.PL}")
    P.raw(f"  s_nop 4")
    P.raw(f"  s_cbranch_vccnz L_p3_spl_{g}_{ph}")
    P.raw(f"  s_branch L_p3_ok_{g}_{ph}")

def p3_gather(R, dst, ph):
    L = [f"s_mov_b32 s{R.sPo}, {ph*SLAB_PH}", f"s_mov_b32 s{R.sPo+1}, {ph*SLAB_PH+10240}"]
    for s in range(2):
        b = dst + 10 * s
        L += [f"buffer_load_dwordx4 {vr(b,4)}, v{R.RD}, {sr(R.sP)}, s{R.sPo+s} offen sc1",
              f"buffer_load_dwordx4 {vr(b+4,4)}, v{R.RD}, {sr(R.sP)}, s{R.sPo+s} offen offset:512 sc1",
              f"buffer_load_dwordx2 {vr(b+8,2)}, v{R.RD+1}, {sr(R.sP)}, s{R.sPo+s} offen offset:1024 sc1"]
    return L

def p3_combine(R, src, sm):
    L = []
    for i in range(10):
        a, b = src + i, src + 10 + i
        L += [f"v_lshlrev_b32 v{sm+2*i}, 16, v{a}", f"v_lshlrev_b32 v{R.T}, 16, v{b}", f"v_add_f32 v{sm+2*i}, v{sm+2*i}, v{R.T}",
              f"v_and_b32 v{sm+2*i+1}, 0xffff0000, v{a}", f"v_and_b32 v{R.T+1}, 0xffff0000, v{b}", f"v_add_f32 v{sm+2*i+1}, v{sm+2*i+1}, v{R.T+1}"]
    pairs = [(i, i + 8) for i in range(8)] + [(16, 18), (17, 19)]
    for a, b in pairs: L.append(f"v_permlane32_swap_b32 v{sm+a}, v{sm+b}")
    for a, b in pairs: L.append(f"v_add_f32 v{sm+a}, v{sm+a}, v{sm+b}")
    return L, [sm + a for a, _ in pairs]

def phase3(P, R, g, cfg, slow):
    E = P.E
    for t in range(NST + 1):
        if t < NST:
            P.wait_all(vm=False)
            P.wait_vm_tag(f"S{t}")
            if t == 11: P.wait_vm_tag("PUB0")
            E("s_barrier")
            if t == 11: p3_flag(P, R, g, 0)
        if t in (1, 8, 16): P.stamp()
        mf = p3_mfma(R, t - 1) if t >= 1 else [None] * 20
        fill = [[] for _ in range(20)]
        if t < NST: fill = merge(fill, spread(p3_reads(R, g, t), 20, end=14))
        if t + 3 < NST: fill = merge(fill, spread(p3_dma(R, g, t + 3, cfg), 20, start=cfg.get("d0", 4), end=20))
        if t == 9: fill = merge(fill, spread(p3_publish(R, R.ACCF, 0), 20))
        if t == 15: fill[0] += p3_poll_issue(R, 0)
        if t == 17:
            fill[0].append(lambda: p3_poll_check(P, R, g, 0, slow))
            fill[1] += p3_gather(R, R.ACCF, 0)
            fill[2] += [f"buffer_load_dwordx4 {vr(R.XS,4)}, v{R.VO}, {sr(R.sXO)}, 0 offen", f"buffer_load_dword v{R.XS+4}, v{R.VO+1}, {sr(R.sXO)}, 0 offen"]
        if t in (20, 21, 22):
            L, res = p3_combine(R, R.ACCF, R.ACCF + 20)
            for i, r in enumerate(res):
                gs = R.ACCF + i
                L += [f"v_mul_f32 v{R.T}, {hex(f2u(-LOG2E))}, v{r}", f"v_exp_f32 v{R.T}, v{R.T}", f"v_add_f32 v{R.T}, 1.0, v{R.T}",
                      f"v_rcp_f32 v{R.T}, v{R.T}", f"v_mul_f32 v{gs}, v{R.T}, v{r}"]
            n = len(L); k = t - 20
            part = L[k * n // 3:(k + 1) * n // 3]
            fill = merge(fill, spread(part, 20))
        weave(P, mf, fill)
        if t == 1:
            E(f"s_cmp_lg_u32 s{R.sQ}, 3"); E(f"s_cbranch_scc1 L_p3_nz{g}")
            P.nop(8)
            for i in range(40): P.raw(f"  v_mov_b32 v{R.ACCF+i}, 0")
            P.raw("  s_nop 1")
            P.label(f"L_p3_nz{g}")
    P.stamp()
    for x in p3_publish(R, R.ACCS, 1): emit(P, x)
    P.wait_vm_tag("PUB1")
    E("s_barrier")
    p3_flag(P, R, g, 1)
    P.stamp()
    for x in p3_poll_issue(R, 1): emit(P, x)
    p3_poll_check(P, R, g, 1, slow)
    P.stamp()
    for x in p3_gather(R, R.ACCS, 1): emit(P, x)
    L, res = p3_combine(R, R.ACCS, R.ACCS + 20)
    for x in L: E(x)
    for i in range(5):
        E(f"v_lshlrev_b32 v{R.T}, 16, v{R.XS+i}"); E(f"v_and_b32 v{R.T+1}, 0xffff0000, v{R.XS+i}")
        E(f"v_fmac_f32 v{R.T}, v{res[2*i]}, v{R.ACCF+2*i}"); E(f"v_fmac_f32 v{R.T+1}, v{res[2*i+1]}, v{R.ACCF+2*i+1}")
        E(f"v_cvt_pk_bf16_f32 v{R.XS+i}, v{R.T}, v{R.T+1}")
    E(f"buffer_store_dwordx4 {vr(R.XS,4)}, v{R.VO}, {sr(R.sOUT)}, 0 offen")
    E(f"buffer_store_dword v{R.XS+4}, v{R.VO+1}, {sr(R.sOUT)}, 0 offen")

def gen_k3(name, cfg):
    P = Prog(); E = P.E
    P.raw(f".globl {name}\n.p2align 8\n.type {name},@function\n{name}:")
    KA = 76
    R = R3()
    R.ACCF = 0; R.ACCS = 40
    R.fr = lambda buf, i: vr(80 + 56 * buf + 4 * i, 4)
    b = 192
    R.XS = b; R.DB = b + 6; R.DH = b + 7; R.DL = b + 8; R.RA = b + 9; R.RB = b + 11; R.WR = b + 13; R.RD = b + 15; R.VO = b + 17
    R.FL = b + 19; R.PL = b + 20; R.T = b + 21; LN = b + 23; VT = b + 24
    NV3 = 224
    R.sA, R.sB, R.sP, R.sF, R.sXO, R.sOUT = 8, 12, 16, 20, 24, 28
    R.sW, R.sQ, R.sAo, R.sBo, R.sMB, R.sMH, R.sML, R.sFo, R.sPo, R.sSP = 40, 41, 42, 43, 44, 45, 46, 47, 48, 50
    if cfg.get("ts"):
        P.ts = {"n": 0, "regs": list(range(82, 102, 2))}
        P.stamp(); P.stamp(True)
    E(f"s_load_dwordx2 s[{KA}:{KA+1}], s[0:1], 0")
    E(f"s_load_dwordx2 s[{KA+2}:{KA+3}], s[0:1], 72")
    E(f"s_load_dwordx2 s[{KA+4}:{KA+5}], s[0:1], 88")
    E("s_cmp_ge_u32 s2, 256")
    E("s_cbranch_scc1 L_k3_end")
    E(f"v_lshrrev_b32 v1, 6, v0"); E(f"v_and_b32 v{LN}, 63, v0")
    E(f"v_readfirstlane_b32 s{R.sW}, v1")
    p3_setup(P, R, KA + 4, KA, KA + 2, LN, sT, VT)
    E(f"s_cmp_ge_u32 s{R.sW}, 4")
    E("s_cbranch_scc1 L_k3_grpB")
    st = P.state()
    slow = []
    for g in range(2):
        if g == 1:
            P.label("L_k3_grpB"); P.set_state(st)
        for s in range(3):
            for x in p3_dma(R, g, s, cfg): emit(P, x)
        p3_setup2(P, R, KA + 4, KA, KA + 2, LN, sT, VT)
        phase3(P, R, g, cfg, slow)
        P.stamp_flush(1, KA + 4, R.sW, R.sA, R.T, R.T + 1)
        E("s_endpgm")
    for s in slow: p3_spin(P, R, *s)
    P.label("L_k3_end")
    P.raw("  s_endpgm")
    desc = f""".amdhsa_kernel {name}
  .amdhsa_next_free_vgpr {NV3}
  .amdhsa_next_free_sgpr 102
  .amdhsa_accum_offset {NV3}
  .amdhsa_group_segment_fixed_size 0
  .amdhsa_kernarg_size 96
  .amdhsa_user_sgpr_count 2
  .amdhsa_user_sgpr_kernarg_segment_ptr 1
  .amdhsa_system_sgpr_workgroup_id_x 1
.end_amdhsa_kernel
"""
    return P, desc
```

```python
from ir import *

NU = 182
WT_OFF = 32 << 20
LOG2E = 1.4426950408889634
import struct
def f2u(x): return struct.unpack("<I", struct.pack("<f", x))[0]

ACC = 0
XF = 128; A0 = 136; AW = 144; AX = 152; DX = 156; DW = 160
SX = 162; SXX = 163; CS = 164; T = 165
DK = 171; DV = 173; VST = 174; LANE = 175
AK = 176; AV = 184
DA = [188, 189, 190, 191, 160]; RD = 161; FL = 164; PL = DK; DB = DK + 1; WR = AV
NV = 192
SLAB_OFF = 64 << 20
FLAG_OFF = 48 << 20
SLAB_PH = 64 * 16 * 10240
sQ, sJ4 = 5, 65
sF, sDBG = 68, 72
sXO, sA3, sB3, sP3, sOUT = 76, 80, 84, 88, 92
sAo, sBo, sMH, sML, sMSK, sSAME, sSP = 43, 44, 45, 47, 56, 58, 59
sPH = 3; sA3f, sA3s = 32, 36
NEGM = 128; PP = 144; LS = 162; LC = 163
AF = 0
QF = 32
NA = 64
sX, sW, sK, sV, sO, sH, sRS, sRD = 8, 12, 16, 20, 24, 28, 32, 36
sWV, sH_, sR_, sPITCH32, sWOFF, sXOFF, sMASK = 40, 41, 42, 43, 44, 45, 46
sM0W, sM0X, sM0K, sKOFF, sVOFF = 47, 48, 49, 50, 51
sHO = 52
sRO = 56
sOO = 60
sT = 64
sTHR = 4
KARG = 80

def vr(b, n): return f"v[{b}:{b+n-1}]"
def ar(b, n): return f"a[{b}:{b+n-1}]"
def sr(b, n=4): return f"s[{b}:{b+n-1}]"

LDS_X = 65536; LDS_SP = 131072

def prologue(P, cfg):
    E = P.E
    KA = 76
    E(f"s_load_dwordx16 s[{KA}:{KA+15}], s[0:1], 0")
    E(f"s_load_dwordx8 s[{KA+16}:{KA+23}], s[0:1], 64")
    pX, pK, pV, pWQ, pWO, pWG, pWU, pWD, pWS = KA, KA+2, KA+4, KA+6, KA+8, KA+12, KA+14, KA+16, KA+22
    E("s_cmp_ge_u32 s2, 256")
    E("s_cbranch_scc1 L_k1_end")
    E(f"v_lshrrev_b32 v1, 6, v0")
    E(f"v_and_b32 v{LANE}, 63, v0")
    E(f"v_readfirstlane_b32 s{sWV}, v1")
    sFG = 3
    E(f"s_bfe_u32 s{sQ}, s2, 0x20001"); E(f"s_bfe_u32 s{sT+1}, s2, 0x30003")
    E(f"s_lshl_b32 s{sT}, s{sQ}, 3"); E(f"s_add_u32 s{sH_}, s{sT}, s{sT+1}")
    E(f"s_sub_u32 s{sFG}, s{sH_}, s{sQ}")
    E(f"s_cmp_eq_u32 s{sT+1}, 7"); E(f"s_cselect_b32 s{sFG}, 27, s{sFG}")
    E(f"s_and_b32 s{sT}, s2, 1"); E(f"s_lshl_b32 s{sT}, s{sT}, 2"); E(f"s_lshr_b32 s{sR_}, s2, 6"); E(f"s_add_u32 s{sR_}, s{sR_}, s{sT}")
    E(f"s_mov_b32 s{sMASK}, 0xffff0000")
    L = LANE
    E(f"v_lshrrev_b32 v1, 3, v{L}")
    E(f"v_mul_u32_u24 v2, 1280, v1")
    E(f"v_lshrrev_b32 v3, 4, v{L}")
    E(f"v_and_b32 v4, 7, v{L}")
    E(f"v_xor_b32 v5, v4, v3")
    E(f"v_lshl_add_u32 v{DX}, v5, 4, v2")
    E(f"v_xor_b32 v{DX+1}, 64, v{DX}")
    E(f"v_add_u32 v{DX+1}, {10240-1024}, v{DX+1}")
    E(f"v_add_u32 v{DX+2}, {2*(10240-1024)}, v{DX}")
    E(f"v_add_u32 v{DX+3}, {2*(10240-1024)}, v{DX+1}")
    w = sWV
    E(f"s_movk_i32 s{sT}, 3456")
    E(f"s_cmp_lt_u32 s{w}, 4")
    E(f"s_cselect_b32 s{sT}, 8192, s{sT}")
    E(f"s_cselect_b32 s{sT+1}, 2, 1")
    E(f"s_lshl_b32 s{sPITCH32}, s{sT}, 5")
    E(f"s_cmp_ge_u32 s{w}, 6")
    E(f"s_cselect_b32 s{sT+2}, 4, 0")
    E(f"s_and_b32 s{sT+3}, s{w}, 1"); E(f"s_lshl_b32 s{sT+3}, s{sT+3}, 4")
    E(f"v_add_u32 v6, s{sT+3}, v1")
    E(f"v_mul_lo_u32 v6, v6, s{sT}")
    E(f"v_and_b32 v7, 1, v3")
    E(f"v_lshlrev_b32 v7, s{sT+1}, v7")
    E(f"v_add_u32 v7, s{sT+2}, v7")
    E(f"v_xor_b32 v7, v7, v4")
    E(f"v_lshl_add_u32 v{DW}, v7, 4, v6")
    E(f"s_lshl_b32 s{sT+4}, s{sT}, 3"); E(f"s_sub_u32 s{sT+4}, s{sT+4}, 1024")
    E(f"v_add_u32 v{DW+1}, s{sT+4}, v{DW}")
    E(f"s_lshl_b32 s{sM0W}, s{w}, 11")
    E(f"s_lshl_b32 s{sM0X}, s{w}, 12"); E(f"s_add_u32 s{sM0X}, s{sM0X}, {LDS_X}")
    P.force_wait("lgkmcnt(0)")
    E(f"s_lshl_b32 s{sT+5}, s{sR_}, 3"); E(f"s_add_u32 s{sT+5}, s{sT+5}, s{w}")
    E(f"s_mul_i32 s{sT+5}, s{sT+5}, {32*1280}")
    E(f"s_add_u32 s{sX}, s{pX}, s{sT+5}"); E(f"s_addc_u32 s{sX+1}, s{pX+1}, 0")
    E(f"s_mov_b32 s{sX+2}, {32*1280}"); E(f"s_mov_b32 s{sX+3}, 0x20000")
    E(f"s_cmp_ge_u32 s{w}, 6")
    E(f"s_cselect_b32 s{sT+6}, s{pWU}, s{pWG}"); E(f"s_cselect_b32 s{sT+7}, s{pWU+1}, s{pWG+1}")
    E(f"s_lshl_b32 s{sT+8}, s{sFG}, 7")
    E(f"s_sub_u32 s{sT+9}, {640*3456}, s{sT+8}")
    E(f"s_cmp_lt_u32 s{sFG}, 27")
    E(f"s_cselect_b32 s{sT+9}, s{sT+9}, 0")
    E(f"s_cselect_b32 s{sT+8}, s{sT+8}, 0")
    E(f"s_lshl_b32 s{sT+10}, s{sH_}, 8"); E(f"s_lshr_b32 s{sT+11}, s{w}, 1"); E(f"s_lshl_b32 s{sT+11}, s{sT+11}, 7")
    E(f"s_add_u32 s{sT+10}, s{sT+10}, s{sT+11}")
    E(f"s_sub_u32 s{sT+11}, {640*8192}, s{sT+10}")
    E(f"s_cmp_lt_u32 s{w}, 4")
    E(f"s_cselect_b32 s{sT+6}, s{pWQ}, s{sT+6}"); E(f"s_cselect_b32 s{sT+7}, s{pWQ+1}, s{sT+7}")
    E(f"s_cselect_b32 s{sT+8}, s{sT+10}, s{sT+8}"); E(f"s_cselect_b32 s{sW+2}, s{sT+11}, s{sT+9}")
    E(f"s_add_u32 s{sW}, s{sT+6}, s{sT+8}"); E(f"s_addc_u32 s{sW+1}, s{sT+7}, 0")
    E(f"s_mov_b32 s{sW+3}, 0x20000")
    E(f"s_mov_b32 s{sWOFF}, 0"); E(f"s_mov_b32 s{sXOFF}, 0")
    for x in dma_w(0): emit(P, x)
    for x in dma_x(0): emit(P, x)
    for x in dma_w(1): emit(P, x)
    for x in dma_w(2): emit(P, x)
    for x in dma_x(1): emit(P, x)
    for x in dma_w(3): emit(P, x)
    E(f"v_bfe_u32 v8, v{L}, 2, 2")
    E(f"v_and_b32 v9, 3, v{L}")
    E(f"v_lshrrev_b32 v10, 5, v{L}")
    E(f"v_and_b32 v11, 31, v{L}")
    E(f"v_and_b32 v12, 1, v3")
    E(f"v_lshrrev_b32 v13, 1, v8")
    E(f"v_lshl_add_u32 v14, v10, 3, v8")
    E(f"v_lshlrev_b32 v14, 7, v14")
    E(f"v_lshl_add_u32 v15, v13, 6, v14")
    E(f"v_lshl_add_u32 v15, v12, 5, v15")
    E(f"v_and_b32 v16, 1, v9"); E(f"v_lshl_add_u32 v15, v16, 4, v15")
    E(f"v_lshrrev_b32 v17, 1, v9"); E(f"v_lshl_add_u32 v15, v17, 3, v15")
    E(f"v_mul_u32_u24 v18, {4096+64}, v12")
    E(f"v_add3_u32 v18, v18, v14, 0")
    E(f"v_lshl_add_u32 v18, v13, 5, v18")
    E(f"v_lshl_add_u32 v18, v9, 3, v18")
    E(f"v_add_u32 v18, 8192, v18")
    E(f"s_and_b32 s{sT}, s{w}, 3")
    for j in range(4):
        E(f"s_xor_b32 s{sT+1}, s{sT}, {j}")
        E(f"s_and_b32 s{sT+2}, s{sT+1}, 1"); E(f"s_lshl_b32 s{sT+2}, s{sT+2}, 6")
        E(f"s_lshr_b32 s{sT+3}, s{sT+1}, 1"); E(f"s_lshl_b32 s{sT+3}, s{sT+3}, 12")
        E(f"s_or_b32 s{sT+2}, s{sT+2}, s{sT+3}")
        E(f"v_xor_b32 v{AW+j}, s{sT+2}, v15")
        E(f"s_lshl_b32 s{sT+3}, s{sT+1}, 5")
        E(f"v_xor_b32 v{AW+4+j}, s{sT+3}, v18")
        E(f"s_lshl_b32 s{sT+4}, s{sFG}, 1"); E(f"s_lshr_b32 s{sT+5}, s{sT+1}, 1")
        E(f"s_add_u32 s{sT+4}, s{sT+4}, s{sT+5}"); E(f"s_add_u32 s{sT+4}, s{sT+4}, 128"); E(f"s_lshl_b32 s{sT+4}, s{sT+4}, 13")
        E(f"s_and_b32 s{sT+5}, s{sT+1}, 1"); E(f"s_lshl_b32 s{sT+5}, s{sT+5}, 9")
        E(f"s_add_u32 s{sHO+j}, s{sT+4}, s{sT+5}")
        E(f"s_lshl_b32 s{sT+4}, s{sH_}, 15"); E(f"s_add_u32 s{sOO+j}, s{sT+4}, {j*8192}")
    E(f"s_cmp_lt_u32 s{w}, 4")
    E("s_cbranch_scc1 L_noswap")
    for j in range(4): E(f"v_swap_b32 v{AW+j}, v{AW+4+j}")
    P.label("L_noswap"); P.nop(2)
    E(f"v_bfe_u32 v19, v{L}, 1, 3"); E(f"v_xor_b32 v19, v19, v10")
    E(f"v_lshlrev_b32 v19, 4, v19"); E(f"v_lshl_add_u32 v19, v11, 7, v19")
    E(f"v_add_u32 v{AX}, s{sM0X}, v19")
    for s in range(1, 4): E(f"v_xor_b32 v{AX+s}, {32*s}, v{AX}")
    E(f"v_and_b32 v19, 15, v{L}"); E(f"v_xor_b32 v19, v19, v10"); E(f"v_lshlrev_b32 v19, 4, v19")
    E(f"v_lshl_add_u32 v19, v11, 8, v19")
    E(f"s_lshl_b32 s{sT+1}, s{sT}, 6"); E(f"s_add_u32 s{sT+1}, s{sT+1}, {LDS_SP}")
    E(f"v_xor_b32 v{AK}, s{sT+1}, v19")
    for s in range(1, 8): E(f"v_xor_b32 v{AK+s}, {32*s}, v{AK}")
    E(f"v_lshl_add_u32 v19, v10, 2, v8"); E(f"v_lshlrev_b32 v19, 8, v19")
    E(f"v_lshl_add_u32 v19, v8, 6, v19"); E(f"v_lshl_add_u32 v19, v12, 5, v19"); E(f"v_lshl_add_u32 v19, v9, 3, v19")
    E(f"v_add_u32 v{AV}, {LDS_SP+16384}, v19")
    for d in range(1, 4): E(f"v_xor_b32 v{AV+d}, {64*d}, v{AV}")
    E(f"s_lshl_b32 s{sM0K}, s{w}, 11")
    E(f"v_and_b32 v19, 15, v{L}")
    E(f"v_lshl_add_u32 v20, v3, 8, s{sM0K}")
    E(f"s_and_b32 s{sT+2}, s{w}, 1"); E(f"s_lshl_b32 s{sT+2}, s{sT+2}, 3")
    E(f"v_add_u32 v21, s{sT+2}, v3"); E(f"v_xor_b32 v21, v21, v19")
    E(f"v_lshl_add_u32 v{DK}, v21, 4, v20")
    E(f"v_xor_b32 v{DK+1}, 64, v{DK}")
    E(f"v_lshlrev_b32 v21, 2, v3"); E(f"v_xor_b32 v21, v21, v19")
    E(f"v_lshl_add_u32 v{DV}, v21, 4, v20")
    E(f"v_lshl_add_u32 v21, v10, 4, v19"); E(f"v_lshlrev_b32 v21, 4, v21")
    E(f"v_lshl_add_u32 v{VST}, v12, 10, v21")
    E(f"s_lshl_b32 s{sT+2}, s{sH_}, 19"); E(f"s_add_u32 s{sT+2}, s{sT+2}, {1536*256}")
    for (sd, pp) in ((sK, pK), (sV, pV)):
        E(f"s_add_u32 s{sd}, s{pp}, s{sT+2}"); E(f"s_addc_u32 s{sd+1}, s{pp+1}, 0")
        E(f"s_mov_b32 s{sd+2}, {512*256}"); E(f"s_mov_b32 s{sd+3}, 0x20000")
    E(f"s_mov_b32 s{sKOFF}, 0"); E(f"s_mov_b32 s{sVOFF}, 0")
    E(f"s_lshl_b32 s{sT+2}, s{sR_}, 1"); E(f"s_lshr_b32 s{sT+3}, s{w}, 2"); E(f"s_add_u32 s{sT+2}, s{sT+2}, s{sT+3}")
    E(f"s_mul_i32 s{sT+2}, s{sT+2}, {NU*8192}")
    E(f"s_and_b32 s{sT+3}, s{w}, 3"); E(f"s_lshl_b32 s{sT+3}, s{sT+3}, 11"); E(f"s_add_u32 s{sT+2}, s{sT+2}, s{sT+3}")
    E(f"s_add_u32 s{sO}, s{pWS}, s{sT+2}"); E(f"s_addc_u32 s{sO+1}, s{pWS+1}, 0")
    E(f"s_mov_b32 s{sO+2}, {NU*8192}"); E(f"s_mov_b32 s{sO+3}, 0x20000")
    E(f"s_mov_b32 s{sH}, s{sO}"); E(f"s_mov_b32 s{sH+1}, s{sO+1}"); E(f"s_mov_b32 s{sH+3}, 0x20000")
    E(f"s_cmp_lt_u32 s{sFG}, 27"); E(f"s_cselect_b32 s{sH+2}, {NU*8192}, 0")
    pOUT, pDBG = KA + 18, KA + 20
    t = sT
    E(f"s_bfe_u32 s{t+2}, s2, 0x30003")
    E(f"s_lshr_b32 s{t+3}, s{t+2}, 2"); E(f"s_lshl_b32 s{t}, s{sR_}, 1"); E(f"s_add_u32 s{t}, s{t}, s{t+3}")
    E(f"s_and_b32 s{t+3}, s{t+2}, 3")
    E(f"s_lshl_b32 s{sJ4}, s{t+2}, 2")
    E(f"s_mov_b32 s{sXO+2}, {2048*1280}"); E(f"s_mov_b32 s{sXO+3}, 0x20000")
    E(f"s_mul_i32 s{t+2}, s{t+3}, 320")
    for (sd, pp, rows) in ((sA3f, pWD, 1728), (sA3s, pWO, 4096)):
        E(f"s_add_u32 s{sd}, s{pp}, s{t+2}"); E(f"s_addc_u32 s{sd+1}, s{pp+1}, 0")
        E(f"s_sub_u32 s{sd+2}, {rows*1280}, s{t+2}"); E(f"s_mov_b32 s{sd+3}, 0x20000")
    E(f"s_mul_i32 s{t+2}, s{t}, {NU*8192}")
    E(f"s_add_u32 s{sB3}, s{pWS}, s{t+2}"); E(f"s_addc_u32 s{sB3+1}, s{pWS+1}, 0")
    E(f"s_mov_b32 s{sB3+2}, {NU*8192}"); E(f"s_mov_b32 s{sB3+3}, 0x20000")
    E(f"s_lshl_b32 s{t+2}, s{t}, 2"); E(f"s_add_u32 s{t+2}, s{t+2}, s{t+3}")
    E(f"s_mul_i32 s{t+2}, s{t+2}, 163840"); E(f"s_mul_i32 s{t+3}, s{w}, 1280"); E(f"s_add_u32 s{t+2}, s{t+2}, s{t+3}")
    E(f"s_add_u32 s{t+2}, s{t+2}, {SLAB_OFF}")
    E(f"s_add_u32 s{sP3}, s{pWS}, s{t+2}"); E(f"s_addc_u32 s{sP3+1}, s{pWS+1}, 0")
    E(f"s_mov_b32 s{sP3+2}, {SLAB_PH+163840}"); E(f"s_mov_b32 s{sP3+3}, 0x20000")
    E(f"s_mov_b32 s{sOUT}, s{pOUT}"); E(f"s_mov_b32 s{sOUT+1}, s{pOUT+1}")
    E(f"s_mov_b32 s{sOUT+2}, {2048*1280}"); E(f"s_mov_b32 s{sOUT+3}, 0x20000")
    E(f"s_lshl_b32 s{t+2}, s{sR_}, 2"); E(f"s_add_u32 s{t+2}, s{t+2}, s{sQ}"); E(f"s_lshl_b32 s{t+2}, s{t+2}, 7")
    E(f"s_add_u32 s{t+2}, s{t+2}, {FLAG_OFF}")
    E(f"s_add_u32 s{sF}, s{pWS}, s{t+2}"); E(f"s_addc_u32 s{sF+1}, s{pWS+1}, 0")
    E(f"s_mov_b32 s{sF+2}, 96"); E(f"s_mov_b32 s{sF+3}, 0x20000")
    E(f"s_mov_b32 s{sDBG}, s{pDBG}"); E(f"s_mov_b32 s{sDBG+1}, s{pDBG+1}")
    E(f"s_mov_b32 s{sDBG+2}, 256"); E(f"s_mov_b32 s{sDBG+3}, 0x20000")
    E(f"s_getreg_b32 s{t+2}, hwreg(HW_REG_XCC_ID, 0, 4)")
    E(f"v_lshlrev_b32 v21, 5, v{L}"); E(f"v_add_u32 v21, s{sJ4}, v21")
    E(f"v_mov_b32 v22, s{t+2}"); E(f"v_cmp_eq_u32 vcc, 2, v{L}"); E(f"v_cndmask_b32 v22, 0, v22, vcc")
    E(f"buffer_store_dword v22, v21, {sr(sF)}, 0 offen sc1", "CLR")
    E(f"v_mul_u32_u24 v21, 10240, v8"); E(f"v_lshl_add_u32 v21, v3, 6, v21"); E(f"v_lshl_add_u32 v21, v9, 4, v21")
    E(f"s_mul_i32 s{t+2}, s{sQ}, 40960"); E(f"v_add_u32 v21, s{t+2}, v21")
    E(f"v_bfrev_b32 v22, 2")
    E(f"v_cmp_eq_u32 vcc, s{sQ}, v8"); E(f"v_cndmask_b32 v{T+4}, v21, v22, vcc")
    E(f"s_lshl_b32 s{t+2}, s{sQ}, 2"); E(f"s_lshl_b32 s{sMSK}, 0x000f000f, s{t+2}"); E(f"s_not_b32 s{sMSK}, s{sMSK}"); E(f"s_mov_b32 s{sMSK+1}, s{sMSK}")
    E(f"s_mov_b32 s{sPH}, {SLAB_PH}")
    E(f"s_and_b32 s{t+2}, s{w}, 3"); E(f"s_mul_i32 s{t+2}, s{t+2}, {16*1280}")
    for n in range(5):
        d = DA[n] if n < 4 else T + 5
        E(f"v_add_u32 v21, {64*n}, v{L}"); E(f"v_mul_u32_u24 v22, 3277, v21"); E(f"v_lshrrev_b32 v22, 16, v22")
        E(f"v_mul_u32_u24 v23, 20, v22"); E(f"v_sub_u32 v21, v21, v23"); E(f"v_bfe_u32 v23, v22, 2, 1"); E(f"v_xor_b32 v21, v21, v23")
        E(f"v_mul_u32_u24 v22, 1280, v22"); E(f"v_lshl_add_u32 v21, v21, 4, v22")
        E(f"s_sub_u32 s{t+3}, s{t+2}, {1024*(n%3)}"); E(f"v_add_u32 v{d}, s{t+3}, v21")
    for r in (SX, SXX, CS): E(f"v_mov_b32 v{r}, 0")

def signal(P, name, ins, tv):
    lab = f"L_sig_{name}"
    P.E(f"s_cmp_lg_u32 s{sWV}, 0"); P.E(f"s_cbranch_scc1 {lab}")
    P.raw(f"  v_mov_b32 v{tv}, 1")
    P.raw(f"  s_mov_b64 exec, 1")
    P.raw(f"  {ins}")
    P.raw(f"  s_mov_b64 exec, -1")
    P.label(lab)

def dma_w(s):
    slot = (s % 4) * 16384
    return [f"s_add_u32 m0, s{sM0W}, {slot}",
            (f"buffer_load_dwordx4 v{DW}, {sr(sW)}, s{sWOFF} offen lds", f"W{s}"),
            (f"buffer_load_dwordx4 v{DW+1}, {sr(sW)}, s{sWOFF} offen offset:1024 lds", f"W{s}"),
            f"s_add_u32 s{sWOFF}, s{sWOFF}, s{sPITCH32}"]
def dma_x(xs):
    return [f"s_add_u32 m0, s{sM0X}, {(xs % 2) * 32768}"] + \
           [(f"buffer_load_dwordx4 v{DX+i}, {sr(sX)}, s{sXOFF} offen offset:{1024*i} lds", f"X{xs}") for i in range(4)] + \
           [f"s_add_u32 s{sXOFF}, s{sXOFF}, 128"]
def kslot(c): return LDS_SP if c == 0 else ((c - 1) % 4) * 16384
def vslot(c): return LDS_SP + 16384 if c == 0 else LDS_X + ((c - 1) % 4) * 16384
def dma_k(c):
    return [f"s_add_u32 m0, s{sM0K}, {kslot(c)}",
            (f"buffer_load_dwordx4 v{DK}, {sr(sK)}, s{sKOFF} offen lds", f"K{c}"),
            (f"buffer_load_dwordx4 v{DK+1}, {sr(sK)}, s{sKOFF} offen offset:1024 lds", f"K{c}"),
            f"s_add_u32 s{sKOFF}, s{sKOFF}, 16384"]
def dma_v(c):
    return [f"s_add_u32 m0, s{sM0K}, {vslot(c)}",
            (f"buffer_load_dwordx4 v{DV}, {sr(sV)}, s{sVOFF} offen lds", f"V{c}"),
            (f"buffer_load_dwordx4 v{DV}, {sr(sV)}, s{sVOFF} offen offset:1024 lds", f"V{c}"),
            f"s_add_u32 s{sVOFF}, s{sVOFF}, 16384"]

def afrag(j, n):
    if j == 0:
        b = A0 + 4 * (n % 2); return vr(b, 4), vr(b, 2), vr(b + 2, 2)
    b = AF + 4 * j; return ar(b, 4), ar(b, 2), ar(b + 2, 2)
def rd_a(j, n):
    s = n // 2; off = (s % 4) * 16384 + (n % 2) * 16 * 128
    _, lo, hi = afrag(j, n)
    return [f"ds_read_b64_tr_b16 {lo}, v{AW+j} offset:{off}", f"ds_read_b64_tr_b16 {hi}, v{AW+j} offset:{off+512}"]
def rd_x(n):
    xs = n // 4
    return [f"ds_read_b128 {vr(XF+4*(n%2),4)}, v{AX+n%4} offset:{(xs%2)*32768}"]

def stats(n):
    L = []
    xb = XF + 4 * (n % 2); ab = A0 + 4 * (n % 2)
    for i in range(4):
        L += [f"v_lshlrev_b32 v{T}, 16, v{xb+i}", f"v_and_b32 v{T+1}, s{sMASK}, v{xb+i}",
              f"v_add_f32 v{SX}, v{SX}, v{T}", f"v_fmac_f32 v{SXX}, v{T}, v{T}",
              f"v_add_f32 v{SX}, v{SX}, v{T+1}", f"v_fmac_f32 v{SXX}, v{T+1}, v{T+1}",
              f"v_lshlrev_b32 v{T+2}, 16, v{ab+i}", f"v_and_b32 v{T+3}, s{sMASK}, v{ab+i}",
              f"v_add_f32 v{CS}, v{CS}, v{T+2}", f"v_add_f32 v{CS}, v{CS}, v{T+3}"]
    return L

def phase1(P, cfg):
    E = P.E
    P.wait_vm_tag("X0")
    E("s_barrier")
    P.stamp()
    for x in rd_x(0) + sum((rd_a(j, 0) for j in range(8)), []): E(x)
    for n in range(40):
        s = n // 2
        mf = []
        for j in range(8):
            c = vr(ACC + 16 * j, 16) if n > 0 else "0"
            mf.append(f"v_mfma_f32_32x32x16_bf16 {vr(ACC+16*j,16)}, {afrag(j,n)[0]}, {vr(XF+4*(n%2),4)}, {c}")
        fill = [[] for _ in range(8)]
        pre = []
        if n % 2 == 1 and s + 1 < 20:
            P.wait_vm_tag(f"W{s+1}")
            if n == 15: P.wait_vm_tag("CLR")
            E("s_barrier")
            if n == 15: signal(P, "arr", f"buffer_atomic_add v{T}, off, {sr(sDBG)}, 0 sc1", T)
            if s >= 1:
                if s + 3 < 20: fill[1] += dma_w(s + 3)
                else: fill[1] += dma_k(s + 3 - 19)
            if s == 18: fill[3] += dma_v(1)
        if n + 1 < 40:
            if n % 4 == 3: fill[0].append(lambda t=f"X{(n+1)//4}": P.wait_vm_tag(t))
            fill[0] += rd_x(n + 1) + rd_a(0, n + 1)
            for j in range(1, 8): fill[j] = rd_a(j, n + 1) + fill[j]
        if n % 4 == 3 and n // 4 + 2 < 10: fill[4] += dma_x(n // 4 + 2)
        if n == cfg.get("kv0", 21):
            fill[5] += dma_k(0); fill[6] += dma_v(0)
        if n == 39: fill[0] += [f"v_mov_b32 v{DA[4]}, v{T+5}", f"v_mov_b32 v{RD}, v{T+4}"]
        if not cfg.get("nostats"):
            fill = merge(fill, spread(stats(n), 8))
        weave(P, mf, fill)
```

```python
from p3 import *

def bf16_round(E, dst, src):
    E(f"v_cvt_pk_bf16_f32 v{dst}, v{src}, v{src}")
    E(f"v_and_b32 v{dst}, s{sMASK}, v{dst}")

def epilogue_common(P, cfg):
    E = P.E
    a, b, c = T + 1, T + 2, T + 3
    bf16_round(E, a, CS)
    E(f"v_sub_f32 v{b}, v{CS}, v{a}")
    bf16_round(E, c, b)
    E(f"v_sub_f32 v{T+4}, v{b}, v{c}")
    E(f"v_cvt_pk_bf16_f32 v{A0}, v{a}, v{c}")
    E(f"v_cvt_pk_bf16_f32 v{A0+1}, v{T+4}, 0")
    E(f"v_lshlrev_b32 v{T+4}, 3, v{LANE}")
    E(f"v_add_u32 v{T+5}, s{sM0X}, v{T+4}")
    E(f"ds_write_b64 v{T+5}, {vr(A0,2)} offset:32768")
    E(f"v_mov_b32 v{a}, v{SX}"); E(f"v_mov_b32 v{b}, v{SXX}")
    E(f"v_permlane32_swap_b32 v{a}, v{SX}"); E(f"v_permlane32_swap_b32 v{b}, v{SXX}")
    E(f"v_add_f32 v{SX}, v{SX}, v{a}"); E(f"v_add_f32 v{SXX}, v{SXX}, v{b}")
    E(f"v_mul_f32 v{SX}, {hex(f2u(1/640))}, v{SX}")
    E(f"v_mul_f32 v{SXX}, {hex(f2u(1/640))}, v{SXX}")
    E(f"v_fma_f32 v{SXX}, -v{SX}, v{SX}, v{SXX}")
    E(f"v_max_f32 v{SXX}, 0, v{SXX}")
    P.wait_all(vm=False)
    P.wait_vm_tag("K0")
    E("s_barrier")
    for j in range(8):
        E(f"s_xor_b32 s{sT}, s{sWV}, {j}"); E(f"s_lshl_b32 s{sT}, s{sT}, 12"); E(f"s_add_u32 s{sT}, s{sT}, {LDS_X}")
        E(f"v_add_u32 v{AW+j}, s{sT}, v{T+4}")
        E(f"ds_read_b64 {ar(AF+4*j,2)}, v{AW+j} offset:32768")
    for x in dma_k(3) + dma_v(2) + dma_k(4): emit(P, x)
    E(f"v_cvt_pk_bf16_f32 v{XF}, -v{SX}, -v{SX}")
    E(f"v_mov_b32 v{XF+1}, v{XF}"); E(f"v_mov_b32 v{XF+2}, 0"); E(f"v_mov_b32 v{XF+3}, 0")
    E(f"v_accvgpr_write_b32 a{AF+2}, 0"); E(f"v_accvgpr_write_b32 a{AF+3}, 0")
    bf16_round(E, a, SXX)
    E(f"v_add_f32 v{a}, {hex(f2u(1e-5))}, v{a}")
    bf16_round(E, a, a)
    E(f"v_sqrt_f32 v{a}, v{a}")
    bf16_round(E, a, a)
    E(f"v_rcp_f32 v{T}, v{a}")

def corr_mfma(j):
    return f"v_mfma_f32_32x32x16_bf16 {vr(ACC+16*j,16)}, {ar(AF+4*j,4)}, {vr(XF,4)}, {vr(ACC+16*j,16)}"

def q_epi(QA):
    L = [f"v_mul_f32 v{T+1}, {hex(f2u(LOG2E * 128 ** -0.5))}, v{T}"]
    for i in range(0, 64, 2):
        t = T + 2 + (i // 2) % 2 * 2
        L += [f"v_mul_f32 v{t}, v{T+1}, v{QA+i}", f"v_mul_f32 v{t+1}, v{T+1}, v{QA+i+1}",
              f"v_cvt_pk_bf16_f32 v{t}, v{t}, v{t+1}", f"v_accvgpr_write_b32 a{QF+i//2}, v{t}"]
    return L

def f_epi(FA, cfg, c1, c2, tmp):
    L = [f"v_mul_f32 v{c1}, {hex(f2u(-LOG2E))}, v{T}", f"v_mul_f32 v{c2}, v{T}, v{T}"]
    for j in range(4):
        b = FA + 16 * j
        for r in range(0, 8, 2):
            t0, t1 = tmp[0], tmp[1]
            L += [f"v_mul_f32 v{t0}, v{c1}, v{b+r}", f"v_mul_f32 v{t1}, v{c1}, v{b+r+1}",
                  f"v_exp_f32 v{t0}, v{t0}", f"v_exp_f32 v{t1}, v{t1}",
                  f"v_mul_f32 v{b+r}, v{b+r}, v{b+8+r}", f"v_mul_f32 v{b+r+1}, v{b+r+1}, v{b+9+r}",
                  f"v_add_f32 v{t0}, 1.0, v{t0}", f"v_add_f32 v{t1}, 1.0, v{t1}",
                  f"v_rcp_f32 v{t0}, v{t0}", f"v_rcp_f32 v{t1}, v{t1}",
                  f"v_mul_f32 v{b+r}, v{c2}, v{b+r}", f"v_mul_f32 v{b+r+1}, v{c2}, v{b+r+1}",
                  f"v_mul_f32 v{t0}, v{t0}, v{b+r}", f"v_mul_f32 v{t1}, v{t1}, v{b+r+1}",
                  f"v_cvt_pk_bf16_f32 v{b+8+r//2}, v{t0}, v{t1}"]
        L.append((f"buffer_store_dwordx4 {vr(b+8,4)}, v{VST}, {sr(sH)}, s{sHO+j} offen sc1", "H"))
    return L

def kaddr_off(c): return 0 if c == 0 else kslot(c)
def vaddr_off(c): return 0 if c == 0 else vslot(c) - LDS_X
class Seq:
    pass

def attn_items(S, O):
    ops = []
    def qk(c):
        Sb = S[c % 2]
        for i in range(16):
            kt, s = i % 2, i // 2
            d = vr(Sb + 16 * kt, 16)
            cc = d if s > 0 else ("0" if c == 0 else vr(NEGM, 16))
            ops.append(("QK", c, i,
                        lambda f, d=d, cc=cc, s=s: f"v_mfma_f32_32x32x16_bf16 {d}, {ar(f,4)}, {ar(QF+4*s,4)}, {cc}",
                        lambda f, s=s, kt=kt, c=c: [f"ds_read_b128 {ar(f,4)}, v{AK+s} offset:{kaddr_off(c)+8192*kt}"]))
    def pv(c):
        for i in range(16):
            u, dt = (i // 4, i % 4) if c < 7 else (i % 4, i // 4)
            d = vr(O + 16 * dt, 16)
            cc = d if (c > 0 or u > 0) else "0"
            ops.append(("PV", c, i,
                        lambda f, d=d, cc=cc, u=u: f"v_mfma_f32_32x32x16_bf16 {d}, {ar(f,4)}, {vr(PP+4*u,4)}, {cc}",
                        lambda f, u=u, dt=dt, c=c: [f"ds_read_b64_tr_b16 {ar(f,2)}, v{AV+dt} offset:{vaddr_off(c)+4096*u}",
                                                    f"ds_read_b64_tr_b16 {ar(f+2,2)}, v{AV+dt} offset:{vaddr_off(c)+4096*u+2048}"]))
    qk(0)
    for c in range(8):
        if c < 7: qk(c + 1)
        pv(c)
    return ops

def softmax(Sb, first):
    L = []; W = []
    for i in range(0, 32, 2):
        t = T + (i // 2) % 2 * 2
        L += [f"v_exp_f32 v{t}, v{Sb+i}", f"v_exp_f32 v{t+1}, v{Sb+i+1}"]; W += [2, 2]
        if i == 0: L += [f"v_add_f32 v{LC}, v{t}, v{t+1}"]; W += [1]
        else: L += [f"v_add_f32 v{LC}, v{LC}, v{t}", f"v_add_f32 v{LC}, v{LC}, v{t+1}"]; W += [1, 1]
        L += [f"v_cvt_pk_bf16_f32 v{PP+i//2}, v{t}, v{t+1}"]; W += [1]
    return L, W

def rowmax(Sb, dst, tmp):
    L = [f"v_max3_f32 v{dst}, v{Sb}, v{Sb+1}, v{Sb+2}"]
    for i in range(3, 31, 2): L.append(f"v_max3_f32 v{dst}, v{dst}, v{Sb+i}, v{Sb+i+1}")
    L.append(f"v_max_f32 v{dst}, v{dst}, v{Sb+31}")
    L += [f"v_mov_b32 v{tmp}, v{dst}", f"v_permlane32_swap_b32 v{tmp}, v{dst}", f"v_max_f32 v{dst}, v{dst}, v{tmp}"]
    return L

def attention(P, g, cfg, fallbacks, slow):
    E = P.E
    QA = 64 * g; FA = 64 * (1 - g)
    S = [QA, QA + 32]; O = FA
    qj = range(4 * g, 4 * g + 4); fj = range(4 * (1 - g), 4 * (1 - g) + 4)
    for j in list(qj) + list(fj): E(corr_mfma(j))
    ops = attn_items(S, O)
    NF = 8; LEAD = 8
    for x in q_epi(QA): E(x)
    for k in range(LEAD):
        for x in ops[k][4](AF + 4 * (k % NF)): E(x)
    for x in f_epi(FA, cfg, AW, AW + 1, (AW + 2, AW + 3)): emit(P, x)
    R = R3(g)
    def onorm(dt):
        b = O + 16 * dt
        L = []
        for i in range(8):
            L += [f"v_mul_f32 v{b+2*i}, v{LS}, v{b+2*i}", f"v_mul_f32 v{b+2*i+1}, v{LS}, v{b+2*i+1}",
                  f"v_cvt_pk_bf16_f32 v{b+i}, v{b+2*i}, v{b+2*i+1}"]
        def st():
            ins = [f"buffer_store_dwordx4 {vr(b+4*uu,4)}, v{VST}, {sr(sO)}, s{sOO+dt} offen offset:{512*uu}" for uu in range(2)]
            if cfg.get("same"):
                E(f"s_cmp_lg_u32 s{sSAME}, 0"); E(f"s_cbranch_scc1 L_far_{g}_{dt}")
                for x in ins: P.raw("  " + x)
                P.raw(f"  s_branch L_near_{g}_{dt}")
                P.label(f"L_far_{g}_{dt}")
            for x in ins: E(x + " sc1", "O")
            if cfg.get("same"): P.label(f"L_near_{g}_{dt}")
        return L + [st]
    k = 0
    P.stamp()
    while k < len(ops):
        ph, c, _, _, _ = ops[k]
        seg = ops[k:k + 16]
        mf = [o[3](AF + 4 * ((k + i) % NF)) for i, o in enumerate(seg)]
        fill = [[] for _ in range(16)]
        for i in range(16):
            nk = k + i + LEAD
            if nk < len(ops):
                pre = []
                nph, nc, ni = ops[nk][:3]
                if ni == 0:
                    if nph == "QK":
                        pre.append(lambda nc=nc: (P.wait_vm_tag(f"K{nc}"), P.wait_vm_tag(f"V{nc-1}"), nc == 3 and P.wait_vm_tag("H"), nc == 6 and P.wait_vm_tag("CLR2"), E("s_barrier")))
                        if nc == 6 and g == 0:
                            pre.append(lambda: signal(P, "arr2", f"buffer_atomic_add v{T+4}, off, {sr(sDBG)}, 0 offset:128 sc1", T + 4))
                        if nc == 3 and g == 0:
                            pre.append(lambda: signal(P, "h", f"buffer_store_dword v{T+4}, off, {sr(sF)}, s{sJ4} sc1", T + 4))
                        if nc == 1: pre += [f"v_subrev_u32 v{AK+s}, {LDS_SP}, v{AK+s}" for s in range(8)]
                        post = []
                        if nc >= 2 and nc + 3 < 8: post += dma_k(nc + 3)
                        if nc == 1: post += dma_v(3) + dma_v(4)
                        if nc >= 4 and nc + 1 < 8: post += dma_v(nc + 1)
                        if nc == 5: fill = merge(fill, spread(p3_setup1(), 16, start=i + 2))
                        if nc == 5: post = poll_cnt() + post
                        if nc == 6: post = [lambda: poll_check(P, f"c{g}", poll_cnt()[0], 256, 1, slow)] + poll_flags() + post
                        if nc == 7:
                            post = [lambda: poll_check(P, f"h{g}", poll_flags()[0], 1, 0xff, slow),
                                    f"s_getreg_b32 s{sT}, hwreg(HW_REG_XCC_ID, 0, 4)",
                                    f"v_cmp_ne_u32 vcc, s{sT}, v{PL}", f"s_and_b32 s{sSAME}, vcc_lo, 0xff0000"]
                            D = p3_dma_a(g, 0) + p3_dma_b(g, 0) + p3_dma_a(g, 1) + p3_dma_b(g, 1)
                            fill = merge(fill, spread(D, 16, start=i + 2))
                        if i + 1 < 16: fill[i + 1] += post
                        else: raise ValueError
                    elif nc == 7:
                        pre.append(lambda: (P.wait_vm_tag("V7"), P.wait_vm_tag("S0"), E("s_barrier")))
                        fill = merge(fill, spread(p3_setup2(R) + p3_dma_a(g, 2) + p3_dma_b(g, 2), 16, start=i + 1))
                    if nph == "PV" and nc == 1:
                        pre += [f"v_subrev_u32 v{AV+d}, {LDS_SP+16384-LDS_X}, v{AV+d}" for d in range(4)]
                fill[i] = pre + ops[nk][4](AF + 4 * (nk % NF)) + fill[i]
        sm_c = None
        if ph == "QK" and c >= 1:
            sm_c = c - 1
            L, W = softmax(S[sm_c % 2], False)
            fill = merge(fill, spread(L, 16, W))
        if ph == "PV" and c == 7:
            sm_c = 7
            L, W = softmax(S[1], False)
            for x in L: E(x)
            check(P, g, 7, S, O, fallbacks)
            sm_c = None
            fill[0] += [f"v_mov_b32 v{T}, v{LS}"]
            fill[1] += [f"v_permlane32_swap_b32 v{T}, v{LS}", f"v_add_f32 v{LS}, v{LS}, v{T}"]
            fill[2] += [f"v_rcp_f32 v{LS}, v{LS}"]
            rd = p3_reads(R, g, 0)
            fill = merge(fill, spread(sum(rd[:8], []), 16, start=2, end=12))
            for i in range(6): fill[8 + i] += rd[8 + i]
            for dt in range(3): fill = merge(fill, spread(onorm(dt), 16, start=4 * dt + 5, end=min(16, 4 * dt + 9)))
        if ph == "PV" and c < 3 and not cfg.get("noclr"):
            fill[0] += [f"v_mov_b32 v{T+1+i}, -1" for i in range(4)]
            fill = merge(fill, spread([p3_clear(k_) for k_ in range(10) if k_ % 3 == c], 16, start=1, end=8))
        if ph == "PV" and not cfg.get("nopf"):
            pf = cfg.get("pf", 0)
            if pf <= c < pf + 3: fill = merge(fill, spread(p3_prefetch(c - pf), 16, start=9, end=16))
        weave(P, mf, fill)
        if ph == "QK" and c == 0:
            for x in rowmax(S[0], T + 4, T + 5): E(x)
            for i in range(16): E(f"v_sub_f32 v{NEGM+i}, 0, v{T+4}")
            for i in range(32): E(f"v_sub_f32 v{S[0]+i}, v{S[0]+i}, v{T+4}")
            E(f"v_mov_b32 v{LS}, 0")
        if sm_c is not None: check(P, g, sm_c, S, O, fallbacks)
        k += 16
        if (ph, c) in (("PV", 7),): P.stamp()
    phase3(P, R, g, cfg, slow, onorm(3))
    P.stamp_flush(0, 98, sWV, sK, T, T + 1)
    E("s_endpgm")

def check(P, g, c, S, O, fallbacks):
    E = P.E
    if c > 0:
        E(f"v_cmp_nle_f32 vcc, v{LC}, s{sTHR}")
        E(f"s_cbranch_vccnz L_fb_{g}_{c}")
        P.label(f"L_ret_{g}_{c}")
        fallbacks.append((g, c, S, O))
    E(f"v_add_f32 v{LS}, v{LS}, v{LC}")

def fallback(P, g, c, S, O):
    P.lg = []; P.vm = []; P.hist = []
    E = P.E
    P.label(f"L_fb_{g}_{c}")
    P.nop(16)
    Sb = S[c % 2]; Sn = S[(c + 1) % 2]
    for x in rowmax(Sb, T + 4, T + 5): E(x)
    E(f"v_max_f32 v{T+4}, 0, v{T+4}")
    E(f"v_exp_f32 v{T+5}, -v{T+4}")
    for i in range(16): E(f"v_sub_f32 v{NEGM+i}, v{NEGM+i}, v{T+4}")
    for i in range(32): E(f"v_sub_f32 v{Sb+i}, v{Sb+i}, v{T+4}")
    if c < 7:
        for i in range(32): E(f"v_sub_f32 v{Sn+i}, v{Sn+i}, v{T+4}")
    for i in range(64): E(f"v_mul_f32 v{O+i}, v{T+5}, v{O+i}")
    E(f"v_mul_f32 v{LS}, v{T+5}, v{LS}")
    for x in softmax(Sb, False)[0]: E(x)
    P.nop(4)
    E(f"s_branch L_ret_{g}_{c}")

def gen_k1(name, cfg):
    P = Prog()
    P.raw(f".globl {name}\n.p2align 8\n.type {name},@function\n{name}:")
    if cfg.get("ts"):
        P.ts = {"n": 0, "regs": [100, 66, 8, 10, 12, 14, 80, 82, 28, 30, 52, 54, 20, 22]}
        P.stamp(); P.stamp(True)
    prologue(P, cfg)
    BFLAG[0] = cfg.get('bflag', ' sc1')
    P.E(f"s_mov_b32 s{sTHR}, {hex(f2u(2.0**30))}")
    phase1(P, cfg)
    P.stamp()
    epilogue_common(P, cfg)
    P.E(f"s_cmp_ge_u32 s{sWV}, 4")
    P.E("s_cbranch_scc1 L_grpB")
    st = P.state()
    fb = []; slow = []
    attention(P, 0, cfg, fb, slow)
    P.label("L_grpB")
    P.set_state(st)
    attention(P, 1, cfg, fb, slow)
    for f in fb: fallback(P, *f)
    for f in slow: f()
    P.label("L_k1_end")
    P.raw("  s_endpgm")
    desc = f""".amdhsa_kernel {name}
  .amdhsa_next_free_vgpr {NV+NA}
  .amdhsa_next_free_sgpr 102
  .amdhsa_accum_offset {NV}
  .amdhsa_group_segment_fixed_size 0
  .amdhsa_kernarg_size 96
  .amdhsa_user_sgpr_count 2
  .amdhsa_user_sgpr_kernarg_segment_ptr 1
  .amdhsa_system_sgpr_workgroup_id_x 1
.end_amdhsa_kernel
"""
    return P, desc
```

```python
from k1 import *

NST = 23
BSLOT = [0, 16384, 32768, 68 * 1024]
ASLOT = [120 * 1024, 140 * 1024, 48 * 1024, 84 * 1024]
RBASE = [0, 48 * 1024]
ABASE = [48 * 1024, 112 * 1024]
SPIN = 20000

class R3:
    def __init__(self, g):
        QA = 64 * g; FA = 64 * (1 - g)
        self.ACCF = QA; self.ACCS = FA
        f1 = [QA + 40 + 4 * i for i in range(6)] + [128 + 4 * i for i in range(8)]
        f0 = [32 + 4 * i for i in range(8)] + [4 * i for i in range(6)]
        self.fr = lambda buf, i: ar(f0[i], 4) if buf == 0 else vr(f1[i], 4)
        self.frh = lambda buf, i, e: ar(f0[i] + 2 * e, 2) if buf == 0 else vr(f1[i] + 2 * e, 2)
        self.RA = AK; self.RB = AK + 4; self.VO = AK + 6
        self.XS = FA + 40
        self.T = T

def p3_setup1():
    w = sWV; t = sT
    return [f"s_mul_i32 s{t}, s{sQ}, 14", f"s_min_u32 s{t}, s{t}, 40", f"s_mul_i32 s{sAo}, s{t}, 40960",
            f"s_add_u32 s{t}, s{t}, 128", f"s_lshl_b32 s{sBo}, s{t}, 13",
            f"v_lshlrev_b32 v{DB}, 4, v{LANE}", f"v_add_u32 v{DB}, s{sM0K}, v{DB}",
            f"s_and_b32 s{t}, s{w}, 3", f"s_mul_i32 s{sMH}, s{t}, 5120",
            f"v_and_b32 v{FL}, 31, v{LANE}", f"v_lshlrev_b32 v{FL}, 2, v{FL}"]

def p3_setup2(R):
    t = sT; a = R.RA; v = R.VO
    return [f"v_lshlrev_b32 v{R.RB}, 4, v{LANE}",
            f"s_and_b32 s{t}, s{sWV}, 3", f"s_lshl_b32 s{t}, s{t}, 11",
            f"v_add_u32 v{R.RB}, s{t}, v{R.RB}", f"v_add_u32 v{R.RB+1}, {RBASE[1]}, v{R.RB}",
            f"v_bfe_u32 v{a}, v{LANE}, 2, 3", f"v_lshrrev_b32 v{a+1}, 5, v{LANE}", f"v_lshl_add_u32 v{a}, v{a+1}, 4, v{a}",
            f"v_mul_u32_u24 v{a}, 320, v{a}",
            f"v_bfe_u32 v{a+1}, v{LANE}, 4, 1", f"v_and_b32 v{a+2}, 3, v{LANE}", f"v_xor_b32 v{a+1}, v{a+1}, v{a+2}",
            f"v_lshl_add_u32 v{a}, v{a+1}, 4, v{a}", f"v_and_b32 v{a+2}, 1, v{LANE}", f"v_lshl_add_u32 v{a}, v{a+2}, 3, v{a}",
            f"v_add_u32 v{a+2}, {ABASE[1]}, v{a}", f"v_add_u32 v{a}, {ABASE[0]}, v{a}",
            f"v_xor_b32 v{a+3}, 8, v{a+2}", f"v_xor_b32 v{a+1}, 8, v{a}"]

def p3_setup3(R, g):
    t = sT; u = sSP; v = R.T
    return [f"s_lshl_b32 s{t}, s{sR_}, 8", f"s_lshr_b32 s{u}, s{sJ4}, 4", f"s_lshl_b32 s{u}, s{u}, 7", f"s_add_u32 s{t}, s{t}, s{u}",
            f"s_and_b32 s{u}, s{sWV}, 3", f"s_lshl_b32 s{u}, s{u}, 5", f"s_add_u32 s{t}, s{t}, s{u}",
            f"s_lshl_b32 s{u}, s{sQ}, 2", f"s_add_u32 s{t}, s{t}, s{u}", f"s_mul_i32 s{t}, s{t}, 1280",
            f"s_and_b32 s{u}, s{sJ4}, 12", f"s_mul_i32 s{u}, s{u}, 80", f"s_add_u32 s{t}, s{t}, s{u}",
            f"v_bfe_u32 v{v}, v{LANE}, 3, 1", f"v_and_b32 v{v+1}, 3, v{LANE}", f"v_lshl_add_u32 v{v}, v{v}, 4, v{v+1}",
            f"v_mul_u32_u24 v{v}, 1280, v{v}", f"v_lshrrev_b32 v{v+2}, 4, v{LANE}",
            f"v_lshl_add_u32 v{v}, v{v+2}, 4, v{v}", f"v_add_u32 v{v}, s{t}, v{v}",
            f"v_bfe_u32 v{v+3}, v{LANE}, 2, 1",
            f"v_lshl_add_u32 v{R.VO}, v{v+3}, 6, v{v}", f"v_lshl_add_u32 v{R.VO+1}, v{v+3}, 2, v{v}",
            f"v_and_b32 v{v+3}, 1, v{v+2}", f"v_xor_b32 v{v+3}, {g}, v{v+3}", f"v_lshl_add_u32 v{R.VO+1}, v{v+3}, 3, v{R.VO+1}",
            f"v_bfe_u32 v{v+3}, v{LANE}, 2, 2", f"v_mul_u32_u24 v{v}, 40960, v{v+3}", f"v_lshl_add_u32 v{v}, v{v+2}, 6, v{v}",
            f"v_lshl_add_u32 v{v}, v{v+1}, 4, v{v}", f"s_mul_i32 s{u}, s{sQ}, 10240", f"v_add_u32 v{v}, s{u}, v{v}",
            f"v_bfrev_b32 v{v+1}, 2", f"v_cmp_eq_u32 vcc, s{sQ}, v{v+3}", f"v_cndmask_b32 v{WR}, v{v}, v{v+1}, vcc"]

def p3_dma_a(g, st):
    L = []
    if st == 7: L += [f"s_mul_i32 s{sAo}, s{sQ}, {1024*1280}"]
    heavy = (st % 2) == g
    L += [f"s_add_u32 m0, s{sMH}, {ASLOT[st%4] + (0 if heavy else 3072)}"]
    L += [(f"buffer_load_dwordx4 v{DA[n]}, {sr(sA3f if st < 7 else sA3s)}, s{sAo} offen offset:{1024*(n%3)} lds", f"S{st}") for n in ((0, 1, 2) if heavy else (3, 4))]
    L += [f"s_add_u32 s{sAo}, s{sAo}, {64*1280}"]
    return L
def p3_prefetch(k):
    t = sT; u = sSP; v = T + 5
    L = [f"s_lshr_b32 s{t}, s2, 6", f"s_lshl_b32 s{t}, s{t}, 5", f"s_add_u32 s{t}, s{t}, s{sJ4}"]
    if k < 2:
        L += [f"s_mul_i32 s{t}, s{t}, 10240", f"s_mul_i32 s{u}, s{sQ}, {1024*1280}", f"s_add_u32 s{t}, s{t}, s{u}",
              f"s_mul_i32 s{u}, s{sWV}, 5120", f"s_add_u32 s{t}, s{t}, s{u}"]
        if k == 1: L += [f"s_add_u32 s{t}, s{t}, 3072"]
    else:
        L += [f"s_mul_i32 s{t}, s{t}, 4480", f"s_mul_i32 s{u}, s{sQ}, 14", f"s_min_u32 s{u}, s{u}, 40", f"s_mul_i32 s{u}, s{u}, 40960",
              f"s_add_u32 s{t}, s{t}, s{u}", f"s_mul_i32 s{u}, s{sWV}, 2240", f"s_add_u32 s{t}, s{t}, s{u}"]
    L += [f"s_and_b32 s{u}, s{sJ4}, 12", f"s_mul_i32 s{u}, s{u}, 80", f"s_sub_u32 s{t}, s{t}, s{u}",
          f"v_lshl_add_u32 v{v}, v{LANE}, 4, s{t}", f"s_mov_b32 m0, {LDS_SP}"]
    L += [(f"buffer_load_dwordx4 v{v}, {sr(sA3s if k < 2 else sA3f)}, 0 offen offset:{1024*i} lds", "PF") for i in range(2 if k == 1 else 3)]
    return L
BFLAG = [' sc1']
def p3_dma_b(g, st):
    L = []
    if st == 7: L += [f"s_lshl_b32 s{sBo}, s{sQ}, 18"]
    L += [f"s_add_u32 m0, s{sM0K}, {BSLOT[st%4]}"]
    L += [(f"buffer_load_dwordx4 v{DB}, {sr(sB3)}, s{sBo} offen offset:{1024*i}{BFLAG[0]} lds", f"S{st}") for i in range(2)]
    L += [f"s_add_u32 s{sBo}, s{sBo}, 16384"]
    return L

def p3_reads(R, g, st):
    s4 = st % 4
    hb = 1 if BSLOT[s4] >= 65536 else 0; ha = 1 if ASLOT[s4] >= ABASE[1] else 0
    L = []
    for u in range(2):
        for mi in range(2): L.append([f"ds_read_b128 {R.fr(st%2, 7*u+mi)}, v{R.RB+hb} offset:{BSLOT[s4]-RBASE[hb]+8192*u+1024*mi}"])
        for ni in range(5):
            gam, p = (2 * g + ni // 2, ni % 2) if ni < 4 else (4, g)
            L.append([f"ds_read_b64_tr_b16 {R.frh(st%2, 7*u+2+ni, e)}, v{R.RA+2*ha+p} offset:{ASLOT[s4]-ABASE[ha]+10240*u+2560*e+64*gam}" for e in range(2)])
    return L

def p3_mfma(R, st):
    acc = R.ACCF if st < 7 else R.ACCS
    L = []
    for u in range(2):
        for ni in range(5):
            for mi in range(2):
                d = vr(acc + 20 * mi + 4 * ni, 4)
                first = st in (0, 7) and u == 0
                L.append(f"v_mfma_f32_16x16x32_bf16 {d}, {R.fr(st%2, 7*u+2+ni)}, {R.fr(st%2, 7*u+mi)}, {'0' if first else d}")
    return L

def so(ph): return "0" if ph == 0 else f"s{sPH}"
def p3_cvt(acc): return [f"v_cvt_pk_bf16_f32 v{acc+i}, v{acc+2*i}, v{acc+2*i+1}" for i in range(20)]
def p3_store(acc, ph, i): return f"buffer_store_dwordx4 {vr(acc+4*i,4)}, v{WR}, {sr(sP3)}, {so(ph)} offen offset:{256*i} sc1"
def p3_clear(k): return (f"buffer_store_dwordx4 {vr(T+1,4)}, v{RD}, {sr(sP3)}, {so(k//5)} offen offset:{256*(k%5)} sc1", "CLR2")
def p3_loads(acc, ph, which=range(5)):
    return [f"buffer_load_dwordx4 {vr(acc+4*i,4)}, v{RD}, {sr(sP3)}, {so(ph)} offen offset:{256*i} sc1" for i in which]
def p3_gather(P, acc, ph, which=range(5)):
    P.E(f"s_mov_b64 exec, s[{sMSK}:{sMSK+1}]")
    for x in p3_loads(acc, ph, which): P.E(x)
    P.E("s_mov_b64 exec, -1")
def p3_maxtree(R, acc):
    G = acc
    L = [f"v_max3_u32 v{R.T}, v{G}, v{G+1}, v{G+2}"]
    for i in range(3, 19, 2): L.append(f"v_max3_u32 v{R.T}, v{R.T}, v{G+i}, v{G+i+1}")
    L.append(f"v_max_u32 v{R.T}, v{R.T}, v{G+19}")
    L.append(f"v_cmp_eq_u32 vcc, -1, v{R.T}")
    return L
def p3_xswap(P, R):
    P.E(f"v_mov_b32 v{R.T+5}, v{R.XS}")
    P.E(f"s_mov_b32 exec_lo, s{sMASK}"); P.E(f"s_mov_b32 exec_hi, s{sMASK}")
    P.E(f"v_swap_b32 v{R.XS}, v{R.XS+2}"); P.E(f"v_swap_b32 v{R.XS+1}, v{R.XS+3}")
    P.E("s_mov_b64 exec, -1")
def p3_check(P, R, g, acc, ph, slow):
    for x in p3_maxtree(R, acc): P.E(x)
    P.E(f"s_cbranch_vccnz L_p3_spin_{g}_{ph}")
    P.label(f"L_p3_ok_{g}_{ph}")
    def spin():
        P.label(f"L_p3_spin_{g}_{ph}")
        P.raw(f"  s_mov_b32 s{sSP}, {SPIN}")
        P.label(f"L_p3_spl_{g}_{ph}")
        P.raw(f"  s_sleep 1")
        P.raw(f"  s_mov_b64 exec, s[{sMSK}:{sMSK+1}]")
        for x in p3_loads(acc, ph): P.raw("  " + x)
        P.raw("  s_mov_b64 exec, -1")
        P.raw(f"  s_waitcnt vmcnt(0)")
        for x in p3_maxtree(R, acc): P.raw("  " + x)
        P.raw(f"  s_sub_u32 s{sSP}, s{sSP}, 1")
        P.raw(f"  s_cmp_eq_u32 s{sSP}, 0")
        P.raw(f"  s_cbranch_scc1 L_p3_ok_{g}_{ph}")
        P.raw(f"  s_nop 2")
        P.raw(f"  s_cbranch_vccnz L_p3_spl_{g}_{ph}")
        P.raw(f"  s_branch L_p3_ok_{g}_{ph}")
    slow.append(spin)

RES = list(range(8)) + [16, 17]
def p3_combine(R, acc):
    L = []
    for p in range(19, -1, -1):
        L += [f"v_and_b32 v{acc+2*p+1}, s{sMASK}, v{acc+p}", f"v_lshlrev_b32 v{acc+2*p}, 16, v{acc+p}"]
    K = list(range(19, -1, -1))
    L += [f"v_add_f32_dpp v{acc+k}, v{acc+k}, v{acc+k} row_ror:8 row_mask:0xf bank_mask:0x3" for k in K]
    L += [f"v_add_f32_dpp v{acc+k}, v{acc+20+k}, v{acc+20+k} row_ror:8 row_mask:0xf bank_mask:0xc" for k in K]
    pairs = [(17, 19), (16, 18)] + [(k, k + 8) for k in range(7, -1, -1)]
    L += [f"v_add_f32_dpp v{acc+a}, v{acc+a}, v{acc+a} row_shl:4 row_mask:0xf bank_mask:0x5" for a, b in pairs]
    L += [f"v_add_f32_dpp v{acc+a}, v{acc+b}, v{acc+b} row_shr:4 row_mask:0xf bank_mask:0xa" for a, b in pairs]
    return L

def poll_flags(): return [f"buffer_load_dword v{PL}, v{FL}, {sr(sF)}, 0 offen sc1"]
def poll_cnt(o=0): return [f"buffer_load_dword v{PL}, off, {sr(sDBG)}, 0 offset:{o} sc1"]
def poll_check(P, name, load, val, mask, slow):
    def test(em):
        em(f"v_cmp_ne_u32 vcc, {val}, v{PL}")
        em(f"s_and_b32 s{sT}, vcc_lo, {hex(mask)}")
    test(P.E)
    P.E(f"s_cbranch_scc1 L_spin_{name}")
    P.label(f"L_ok_{name}")
    def spin():
        P.label(f"L_spin_{name}")
        P.raw(f"  s_mov_b32 s{sSP}, {SPIN}")
        P.label(f"L_spl_{name}")
        P.raw(f"  s_sleep 1")
        P.raw("  " + load)
        P.raw(f"  s_sub_u32 s{sSP}, s{sSP}, 1")
        P.raw(f"  s_cmp_eq_u32 s{sSP}, 0")
        P.raw(f"  s_waitcnt vmcnt(0)")
        P.raw(f"  s_cbranch_scc1 L_ok_{name}")
        P.raw(f"  v_cmp_ne_u32 vcc, {val}, v{PL}")
        P.raw(f"  s_nop 4")
        P.raw(f"  s_and_b32 s{sT}, vcc_lo, {hex(mask)}")
        P.raw(f"  s_cbranch_scc1 L_spl_{name}")
        P.raw(f"  s_branch L_ok_{name}")
    slow.append(spin)

def phase3(P, R, g, cfg, slow, tail):
    E = P.E
    OF = cfg.get("of", 3); OC = cfg.get("oc", 5); GF = cfg.get("gf", 14)
    for t in range(1, NST + 1):
        if t < NST:
            P.wait_all(vm=False)
            P.wait_vm_tag(f"S{t}")
            if t == OF: P.wait_vm_tag("O")
            E("s_barrier")
            if t == OF and g == 0: signal(P, "o", f"buffer_store_dword v{R.T+4}, off, {sr(sF)}, s{sJ4} offset:32 sc1", R.T + 4)
        if t in cfg.get('st', (2, 8, 16)): P.stamp()
        mf = p3_mfma(R, t - 1)
        fill = [[] for _ in range(20)]
        if t == 1: fill = merge(fill, spread(tail, 20, end=8))
        if t < NST: fill = merge(fill, spread(sum(p3_reads(R, g, t), []), 20, end=cfg.get("re", 15)))
        D = []
        if t == 1: D += p3_dma_a(g, 3) + p3_dma_b(g, 3)
        if t + 3 < NST:
            D += p3_dma_a(g, t + 3)
            if t + 3 < 7 or t > OC: D += p3_dma_b(g, t + 3)
        if t == OC:
            fill[0].append(lambda: poll_check(P, f"o{g}", poll_flags()[0], 1, 0xff00, slow))
            D = sum((p3_dma_b(g, s_) for s_ in range(7, OC + 4)), []) + D
        d0 = cfg.get("d0", 4)
        if t == 1: d0 = 8
        if t == OC: d0 = 1
        fill = merge(fill, spread(D, 20, start=d0, end=20))
        if t == OC - 1: fill[cfg.get("op", 8)] += poll_flags()
        if t == 2: fill = merge(fill, spread(p3_setup3(R, g), 20))
        if t == OC + 1: fill[4] += poll_cnt(128)
        if t == 8:
            fill = merge(fill, spread(p3_cvt(R.ACCF), 20, start=2, end=16))
            fill[16].append(lambda: poll_check(P, f"d{g}", poll_cnt(128)[0], 256, 1, slow))
        if 8 <= t < 13: fill[17].append(p3_store(R.ACCF, 0, t - 8))
        if GF <= t < GF + 5: fill[1].append(lambda: p3_gather(P, R.ACCF, 0, [t - GF]))
        if t == 13:
            fill[2] += [f"buffer_load_dwordx4 {vr(R.XS,4)}, v{R.VO}, {sr(sXO)}, 0 offen offset:{128*g}",
                        f"buffer_load_dword v{R.XS+4}, v{R.VO+1}, {sr(sXO)}, 0 offen offset:256"]
        if t == 17: fill[10].append(lambda: p3_xswap(P, R))
        CF = GF + 6
        if t == CF: fill[0].append(lambda: p3_check(P, R, g, R.ACCF, 0, slow))
        if CF <= t:
            L = p3_combine(R, R.ACCF)
            for i0 in range(0, 10, 2):
                r0, r1 = R.ACCF + RES[i0], R.ACCF + RES[i0 + 1]; t0, t1 = R.T, R.T + 1
                L += [f"v_mul_f32 v{t0}, {hex(f2u(-LOG2E))}, v{r0}", f"v_mul_f32 v{t1}, {hex(f2u(-LOG2E))}, v{r1}",
                      f"v_exp_f32 v{t0}, v{t0}", f"v_exp_f32 v{t1}, v{t1}", f"v_add_f32 v{t0}, 1.0, v{t0}", f"v_add_f32 v{t1}, 1.0, v{t1}",
                      f"v_rcp_f32 v{t0}, v{t0}", f"v_rcp_f32 v{t1}, v{t1}", f"v_mul_f32 v{r0}, v{t0}, v{r0}", f"v_mul_f32 v{r1}, v{t1}, v{r1}"]
            n = len(L); k = t - CF; nn = NST + 1 - CF
            fill = merge(fill, spread(L[k * n // nn:(k + 1) * n // nn], 20, start=1))
        weave(P, mf, fill)
        if t == 1:
            E(f"s_cmp_lg_u32 s{sQ}, 3"); E(f"s_cbranch_scc1 L_p3_nz{g}")
            P.raw("  s_nop 7")
            for i in range(40): P.raw(f"  v_mov_b32 v{R.ACCF+i}, 0")
            P.raw("  s_nop 1")
            P.label(f"L_p3_nz{g}")
    P.stamp()
    cv = p3_cvt(R.ACCS)
    for i in range(5):
        for x in cv[4 * i:4 * i + 4]: E(x)
        E(p3_store(R.ACCS, 1, i))
    p3_gather(P, R.ACCS, 1)
    p3_check(P, R, g, R.ACCS, 1, slow)
    P.stamp()
    for x in p3_combine(R, R.ACCS): E(x)
    for i in range(5):
        a, b = RES[2 * i], RES[2 * i + 1]
        E(f"v_lshlrev_b32 v{R.T}, 16, v{R.XS+i}"); E(f"v_and_b32 v{R.T+1}, s{sMASK}, v{R.XS+i}")
        E(f"v_fmac_f32 v{R.T}, v{R.ACCS+a}, v{R.ACCF+a}"); E(f"v_fmac_f32 v{R.T+1}, v{R.ACCS+b}, v{R.ACCF+b}")
        E(f"v_cvt_pk_bf16_f32 v{R.XS+i}, v{R.T}, v{R.T+1}")
    E(f"buffer_store_dword v{R.XS+4}, v{R.VO+1}, {sr(sOUT)}, 0 offen offset:256")
    p3_xswap(P, R)
    E(f"buffer_store_dwordx4 {vr(R.XS,4)}, v{R.VO}, {sr(sOUT)}, 0 offen offset:{128*g}")
```

```python
import sys, json
from k1b import gen_k1
NAME = "recurrent_scan__sliding_block_cached__swiglu_ffn__prompt"
def build(cfg, path):
    ref = open(f"cdna_kernels/{NAME}.s.ref").read()
    head = "".join(l + "\n" for l in ref.splitlines() if l.startswith(";") and "@launch" not in l)
    n1 = NAME + "_kernel"
    P1, d1 = gen_k1(n1, cfg)
    s = head + f"; @launch grid=(256,1,1) block=(512,1,1) lds=163840\n"
    s += '.amdgcn_target "amdgcn-amd-amdhsa--gfx950"\n.text\n' + P1.text()
    s += '.section .rodata,"a"\n.p2align 6\n' + d1
    open(path, "w").write(s)
    print("instrs", P1.count, "nops", P1.nops)
if __name__ == "__main__":
    cfg = json.loads(sys.argv[2]) if len(sys.argv) > 2 else {}
    build(cfg, sys.argv[1] if len(sys.argv) > 1 else f"cdna_kernels/{NAME}.s")
```

```python
from ir import *

NU = 182
WT_OFF = 32 << 20
LOG2E = 1.4426950408889634
import struct
def f2u(x): return struct.unpack("<I", struct.pack("<f", x))[0]

ACC = 0
XF = 128; A0 = 136; AW = 144; AX = 152; DX = 156; DW = 160
SX = 162; SXX = 163; CS = 164; T = 165
DK = 171; DV = 173; VST = 174; LANE = 175
AK = 176; AV = 184
DA = [188, 189, 190, 191, 160]; RD = 161; FL = 164; PL = DK; DB = DK + 1; WR = AV
NV = 192
SLAB_OFF = 64 << 20
FLAG_OFF = 48 << 20
SLAB_PH = 64 * 16 * 10240
sQ, sJ4 = 5, 65
sF, sDBG = 68, 72
sXO, sA3, sB3, sP3, sOUT = 76, 80, 84, 88, 92
sAo, sBo, sMH, sML, sMSK, sSAME, sSP = 43, 44, 45, 47, 56, 58, 59
sPH = 3; sA3f, sA3s = 32, 36
sPFO, sPFD = 96, 97
NEGM = 128; PP = 144; LS = 162; LC = 163
AF = 0
QF = 32
NA = 64
sX, sW, sK, sV, sO, sH, sRS, sRD = 8, 12, 16, 20, 24, 28, 32, 36
sWV, sH_, sR_, sPITCH32, sWOFF, sXOFF, sMASK = 40, 41, 42, 43, 44, 45, 46
sM0W, sM0X, sM0K, sKOFF, sVOFF = 47, 48, 49, 50, 51
sHO = 52
sRO = 56
sOO = 60
sT = 64
sTHR = 4
KARG = 80

def vr(b, n): return f"v[{b}:{b+n-1}]"
def ar(b, n): return f"a[{b}:{b+n-1}]"
def sr(b, n=4): return f"s[{b}:{b+n-1}]"

LDS_X = 65536; LDS_SP = 131072

def prologue(P, cfg):
    E = P.E
    KA = 76
    E(f"s_load_dwordx16 s[{KA}:{KA+15}], s[0:1], 0")
    E(f"s_load_dwordx8 s[{KA+16}:{KA+23}], s[0:1], 64")
    pX, pK, pV, pWQ, pWO, pWG, pWU, pWD, pWS = KA, KA+2, KA+4, KA+6, KA+8, KA+12, KA+14, KA+16, KA+22
    E("s_cmp_ge_u32 s2, 256")
    E("s_cbranch_scc1 L_k1_end")
    E(f"v_lshrrev_b32 v1, 6, v0")
    E(f"v_and_b32 v{LANE}, 63, v0")
    E(f"v_readfirstlane_b32 s{sWV}, v1")
    sFG = 3
    E(f"s_bfe_u32 s{sQ}, s2, 0x20001"); E(f"s_bfe_u32 s{sT+1}, s2, 0x30003")
    E(f"s_lshl_b32 s{sT}, s{sQ}, 3"); E(f"s_add_u32 s{sH_}, s{sT}, s{sT+1}")
    E(f"s_sub_u32 s{sFG}, s{sH_}, s{sQ}")
    E(f"s_cmp_eq_u32 s{sT+1}, 7"); E(f"s_cselect_b32 s{sFG}, 27, s{sFG}")
    E(f"s_and_b32 s{sT}, s2, 1"); E(f"s_lshl_b32 s{sT}, s{sT}, 2"); E(f"s_lshr_b32 s{sR_}, s2, 6"); E(f"s_add_u32 s{sR_}, s{sR_}, s{sT}")
    E(f"s_mov_b32 s{sMASK}, 0xffff0000")
    L = LANE
    E(f"v_lshrrev_b32 v1, 3, v{L}")
    E(f"v_mul_u32_u24 v2, 1280, v1")
    E(f"v_lshrrev_b32 v3, 4, v{L}")
    E(f"v_and_b32 v4, 7, v{L}")
    E(f"v_xor_b32 v5, v4, v3")
    E(f"v_lshl_add_u32 v{DX}, v5, 4, v2")
    E(f"v_xor_b32 v{DX+1}, 64, v{DX}")
    E(f"v_add_u32 v{DX+1}, {10240-1024}, v{DX+1}")
    E(f"v_add_u32 v{DX+2}, {2*(10240-1024)}, v{DX}")
    E(f"v_add_u32 v{DX+3}, {2*(10240-1024)}, v{DX+1}")
    w = sWV
    E(f"s_movk_i32 s{sT}, 3456")
    E(f"s_cmp_lt_u32 s{w}, 4")
    E(f"s_cselect_b32 s{sT}, 8192, s{sT}")
    E(f"s_cselect_b32 s{sT+1}, 2, 1")
    E(f"s_lshl_b32 s{sPITCH32}, s{sT}, 5")
    E(f"s_cmp_ge_u32 s{w}, 6")
    E(f"s_cselect_b32 s{sT+2}, 4, 0")
    E(f"s_and_b32 s{sT+3}, s{w}, 1"); E(f"s_lshl_b32 s{sT+3}, s{sT+3}, 4")
    E(f"v_add_u32 v6, s{sT+3}, v1")
    E(f"v_mul_lo_u32 v6, v6, s{sT}")
    E(f"v_and_b32 v7, 1, v3")
    E(f"v_lshlrev_b32 v7, s{sT+1}, v7")
    E(f"v_add_u32 v7, s{sT+2}, v7")
    E(f"v_xor_b32 v7, v7, v4")
    E(f"v_lshl_add_u32 v{DW}, v7, 4, v6")
    E(f"s_lshl_b32 s{sT+4}, s{sT}, 3"); E(f"s_sub_u32 s{sT+4}, s{sT+4}, 1024")
    E(f"v_add_u32 v{DW+1}, s{sT+4}, v{DW}")
    E(f"s_lshl_b32 s{sM0W}, s{w}, 11")
    E(f"s_lshl_b32 s{sM0X}, s{w}, 12"); E(f"s_add_u32 s{sM0X}, s{sM0X}, {LDS_X}")
    P.force_wait("lgkmcnt(0)")
    E(f"s_lshl_b32 s{sT+5}, s{sR_}, 3"); E(f"s_add_u32 s{sT+5}, s{sT+5}, s{w}")
    E(f"s_mul_i32 s{sT+5}, s{sT+5}, {32*1280}")
    E(f"s_add_u32 s{sX}, s{pX}, s{sT+5}"); E(f"s_addc_u32 s{sX+1}, s{pX+1}, 0")
    E(f"s_mov_b32 s{sX+2}, {32*1280}"); E(f"s_mov_b32 s{sX+3}, 0x20000")
    E(f"s_cmp_ge_u32 s{w}, 6")
    E(f"s_cselect_b32 s{sT+6}, s{pWU}, s{pWG}"); E(f"s_cselect_b32 s{sT+7}, s{pWU+1}, s{pWG+1}")
    E(f"s_lshl_b32 s{sT+8}, s{sFG}, 7")
    E(f"s_sub_u32 s{sT+9}, {640*3456}, s{sT+8}")
    E(f"s_cmp_lt_u32 s{sFG}, 27")
    E(f"s_cselect_b32 s{sT+9}, s{sT+9}, 0")
    E(f"s_cselect_b32 s{sT+8}, s{sT+8}, 0")
    E(f"s_lshl_b32 s{sT+10}, s{sH_}, 8"); E(f"s_lshr_b32 s{sT+11}, s{w}, 1"); E(f"s_lshl_b32 s{sT+11}, s{sT+11}, 7")
    E(f"s_add_u32 s{sT+10}, s{sT+10}, s{sT+11}")
    E(f"s_sub_u32 s{sT+11}, {640*8192}, s{sT+10}")
    E(f"s_cmp_lt_u32 s{w}, 4")
    E(f"s_cselect_b32 s{sT+6}, s{pWQ}, s{sT+6}"); E(f"s_cselect_b32 s{sT+7}, s{pWQ+1}, s{sT+7}")
    E(f"s_cselect_b32 s{sT+8}, s{sT+10}, s{sT+8}"); E(f"s_cselect_b32 s{sW+2}, s{sT+11}, s{sT+9}")
    E(f"s_add_u32 s{sW}, s{sT+6}, s{sT+8}"); E(f"s_addc_u32 s{sW+1}, s{sT+7}, 0")
    E(f"s_mov_b32 s{sW+3}, 0x20000")
    E(f"s_mov_b32 s{sWOFF}, 0"); E(f"s_mov_b32 s{sXOFF}, 0")
    for x in dma_w(0): emit(P, x)
    for x in dma_x(0): emit(P, x)
    for x in dma_w(1): emit(P, x)
    for x in dma_w(2): emit(P, x)
    for x in dma_x(1): emit(P, x)
    for x in dma_w(3): emit(P, x)
    if cfg.get("cpf", 1):
        E(f"s_cmp_lg_u32 s{w}, 7"); E("s_cbranch_scc1 L_nocpf")
        P.raw(f"  s_getpc_b64 s[{sT+6}:{sT+7}]"); P.label("L_pc0")
        P.raw(f"  s_bfe_u32 s{sT+8}, s2, 0x50003"); P.raw(f"  s_lshl_b32 s{sT+8}, s{sT+8}, 12")
        P.raw(f"  v_lshl_add_u32 v8, v{L}, 6, s{sT+8}"); P.raw(f"  v_min_u32 v8, L_k1_end-L_pc0, v8")
        P.raw(f"  v_mov_b32 v9, s{sT+7}"); P.raw(f"  v_add_co_u32 v8, vcc, s{sT+6}, v8"); P.raw(f"  v_addc_co_u32 v9, vcc, 0, v9, vcc")
        P.raw(f"  global_load_dword a{QF}, v[8:9], off")
        P.label("L_nocpf")
    E(f"v_bfe_u32 v8, v{L}, 2, 2")
    E(f"v_and_b32 v9, 3, v{L}")
    E(f"v_lshrrev_b32 v10, 5, v{L}")
    E(f"v_and_b32 v11, 31, v{L}")
    E(f"v_and_b32 v12, 1, v3")
    E(f"v_lshrrev_b32 v13, 1, v8")
    E(f"v_lshl_add_u32 v14, v10, 3, v8")
    E(f"v_lshlrev_b32 v14, 7, v14")
    E(f"v_lshl_add_u32 v15, v13, 6, v14")
    E(f"v_lshl_add_u32 v15, v12, 5, v15")
    E(f"v_and_b32 v16, 1, v9"); E(f"v_lshl_add_u32 v15, v16, 4, v15")
    E(f"v_lshrrev_b32 v17, 1, v9"); E(f"v_lshl_add_u32 v15, v17, 3, v15")
    E(f"v_mul_u32_u24 v18, {4096+64}, v12")
    E(f"v_add3_u32 v18, v18, v14, 0")
    E(f"v_lshl_add_u32 v18, v13, 5, v18")
    E(f"v_lshl_add_u32 v18, v9, 3, v18")
    E(f"v_add_u32 v18, 8192, v18")
    E(f"s_and_b32 s{sT}, s{w}, 3")
    for j in range(4):
        E(f"s_xor_b32 s{sT+1}, s{sT}, {j}")
        E(f"s_and_b32 s{sT+2}, s{sT+1}, 1"); E(f"s_lshl_b32 s{sT+2}, s{sT+2}, 6")
        E(f"s_lshr_b32 s{sT+3}, s{sT+1}, 1"); E(f"s_lshl_b32 s{sT+3}, s{sT+3}, 12")
        E(f"s_or_b32 s{sT+2}, s{sT+2}, s{sT+3}")
        E(f"v_xor_b32 v{AW+j}, s{sT+2}, v15")
        E(f"s_lshl_b32 s{sT+3}, s{sT+1}, 5")
        E(f"v_xor_b32 v{AW+4+j}, s{sT+3}, v18")
        E(f"s_lshl_b32 s{sT+4}, s{sFG}, 1"); E(f"s_lshr_b32 s{sT+5}, s{sT+1}, 1")
        E(f"s_add_u32 s{sT+4}, s{sT+4}, s{sT+5}"); E(f"s_add_u32 s{sT+4}, s{sT+4}, 128"); E(f"s_lshl_b32 s{sT+4}, s{sT+4}, 13")
        E(f"s_and_b32 s{sT+5}, s{sT+1}, 1"); E(f"s_lshl_b32 s{sT+5}, s{sT+5}, 9")
        E(f"s_add_u32 s{sHO+j}, s{sT+4}, s{sT+5}")
        E(f"s_mul_i32 s{sT+4}, s{sQ}, 24"); E(f"s_add_u32 s{sT+4}, s{sT+4}, s{sH_}"); E(f"s_lshl_b32 s{sT+4}, s{sT+4}, 13"); E(f"s_add_u32 s{sOO+j}, s{sT+4}, {j*65536}")
    E(f"s_cmp_lt_u32 s{w}, 4")
    E("s_cbranch_scc1 L_noswap")
    for j in range(4): E(f"v_swap_b32 v{AW+j}, v{AW+4+j}")
    P.label("L_noswap"); P.nop(2)
    E(f"v_bfe_u32 v19, v{L}, 1, 3"); E(f"v_xor_b32 v19, v19, v10")
    E(f"v_lshlrev_b32 v19, 4, v19"); E(f"v_lshl_add_u32 v19, v11, 7, v19")
    E(f"v_add_u32 v{AX}, s{sM0X}, v19")
    for s in range(1, 4): E(f"v_xor_b32 v{AX+s}, {32*s}, v{AX}")
    E(f"v_and_b32 v19, 15, v{L}"); E(f"v_xor_b32 v19, v19, v10"); E(f"v_lshlrev_b32 v19, 4, v19")
    E(f"v_lshl_add_u32 v19, v11, 8, v19")
    E(f"s_lshl_b32 s{sT+1}, s{sT}, 6"); E(f"s_add_u32 s{sT+1}, s{sT+1}, {LDS_SP}")
    E(f"v_xor_b32 v{AK}, s{sT+1}, v19")
    for s in range(1, 8): E(f"v_xor_b32 v{AK+s}, {32*s}, v{AK}")
    E(f"v_lshl_add_u32 v19, v10, 2, v8"); E(f"v_lshlrev_b32 v19, 8, v19")
    E(f"v_lshl_add_u32 v19, v8, 6, v19"); E(f"v_lshl_add_u32 v19, v12, 5, v19"); E(f"v_lshl_add_u32 v19, v9, 3, v19")
    E(f"v_add_u32 v{AV}, {LDS_SP+16384}, v19")
    for d in range(1, 4): E(f"v_xor_b32 v{AV+d}, {64*d}, v{AV}")
    E(f"s_lshl_b32 s{sM0K}, s{w}, 11")
    E(f"v_and_b32 v19, 15, v{L}")
    E(f"v_lshl_add_u32 v20, v3, 8, s{sM0K}")
    E(f"s_and_b32 s{sT+2}, s{w}, 1"); E(f"s_lshl_b32 s{sT+2}, s{sT+2}, 3")
    E(f"v_add_u32 v21, s{sT+2}, v3"); E(f"v_xor_b32 v21, v21, v19")
    E(f"v_lshl_add_u32 v{DK}, v21, 4, v20")
    E(f"v_xor_b32 v{DK+1}, 64, v{DK}")
    E(f"v_lshlrev_b32 v21, 2, v3"); E(f"v_xor_b32 v21, v21, v19")
    E(f"v_lshl_add_u32 v{DV}, v21, 4, v20")
    E(f"v_lshl_add_u32 v21, v10, 4, v19"); E(f"v_lshlrev_b32 v21, 4, v21")
    E(f"v_lshl_add_u32 v{VST}, v12, 10, v21")
    E(f"s_lshl_b32 s{sT+2}, s{sH_}, 19"); E(f"s_add_u32 s{sT+2}, s{sT+2}, {1536*256}")
    for (sd, pp) in ((sK, pK), (sV, pV)):
        E(f"s_add_u32 s{sd}, s{pp}, s{sT+2}"); E(f"s_addc_u32 s{sd+1}, s{pp+1}, 0")
        E(f"s_mov_b32 s{sd+2}, {512*256}"); E(f"s_mov_b32 s{sd+3}, 0x20000")
    E(f"s_mov_b32 s{sKOFF}, 0"); E(f"s_mov_b32 s{sVOFF}, 0")
    E(f"s_lshl_b32 s{sT+2}, s{sR_}, 1"); E(f"s_lshr_b32 s{sT+3}, s{w}, 2"); E(f"s_add_u32 s{sT+2}, s{sT+2}, s{sT+3}")
    E(f"s_mul_i32 s{sT+2}, s{sT+2}, {NU*8192}")
    E(f"s_and_b32 s{sT+3}, s{w}, 3"); E(f"s_lshl_b32 s{sT+3}, s{sT+3}, 11"); E(f"s_add_u32 s{sT+2}, s{sT+2}, s{sT+3}")
    E(f"s_add_u32 s{sO}, s{pWS}, s{sT+2}"); E(f"s_addc_u32 s{sO+1}, s{pWS+1}, 0")
    E(f"s_mov_b32 s{sO+2}, {NU*8192}"); E(f"s_mov_b32 s{sO+3}, 0x20000")
    E(f"s_mov_b32 s{sH}, s{sO}"); E(f"s_mov_b32 s{sH+1}, s{sO+1}"); E(f"s_mov_b32 s{sH+3}, 0x20000")
    E(f"s_cmp_lt_u32 s{sFG}, 27"); E(f"s_cselect_b32 s{sH+2}, {NU*8192}, 0")
    pOUT, pDBG = KA + 18, KA + 20
    t = sT
    E(f"s_bfe_u32 s{t+2}, s2, 0x30003")
    E(f"s_lshr_b32 s{t+3}, s{t+2}, 2"); E(f"s_lshl_b32 s{t}, s{sR_}, 1"); E(f"s_add_u32 s{t}, s{t}, s{t+3}")
    E(f"s_and_b32 s{t+3}, s{t+2}, 3")
    E(f"s_lshl_b32 s{sJ4}, s{t+2}, 2")
    E(f"s_mov_b32 s{sXO+2}, {2048*1280}"); E(f"s_mov_b32 s{sXO+3}, 0x20000")
    E(f"s_mul_i32 s{t+2}, s{t+3}, 320")
    for (sd, pp, rows) in ((sA3f, pWD, 1728), (sA3s, pWO, 4096)):
        E(f"s_add_u32 s{sd}, s{pp}, s{t+2}"); E(f"s_addc_u32 s{sd+1}, s{pp+1}, 0")
        E(f"s_sub_u32 s{sd+2}, {rows*1280}, s{t+2}"); E(f"s_mov_b32 s{sd+3}, 0x20000")
    E(f"s_mul_i32 s{t+2}, s{t}, {NU*8192}")
    E(f"s_add_u32 s{sB3}, s{pWS}, s{t+2}"); E(f"s_addc_u32 s{sB3+1}, s{pWS+1}, 0")
    E(f"s_mov_b32 s{sB3+2}, {NU*8192}"); E(f"s_mov_b32 s{sB3+3}, 0x20000")
    E(f"s_lshl_b32 s{t+2}, s{t}, 2"); E(f"s_add_u32 s{t+2}, s{t+2}, s{t+3}")
    E(f"s_mul_i32 s{t+2}, s{t+2}, 163840"); E(f"s_mul_i32 s{t+3}, s{w}, 1280"); E(f"s_add_u32 s{t+2}, s{t+2}, s{t+3}")
    E(f"s_add_u32 s{t+2}, s{t+2}, {SLAB_OFF}")
    E(f"s_add_u32 s{sP3}, s{pWS}, s{t+2}"); E(f"s_addc_u32 s{sP3+1}, s{pWS+1}, 0")
    E(f"s_mov_b32 s{sP3+2}, {SLAB_PH+163840}"); E(f"s_mov_b32 s{sP3+3}, 0x20000")
    E(f"s_mov_b32 s{sOUT}, s{pOUT}"); E(f"s_mov_b32 s{sOUT+1}, s{pOUT+1}")
    E(f"s_mov_b32 s{sOUT+2}, {2048*1280}"); E(f"s_mov_b32 s{sOUT+3}, 0x20000")
    E(f"s_lshl_b32 s{t+2}, s{sR_}, 2"); E(f"s_add_u32 s{t+2}, s{t+2}, s{sQ}"); E(f"s_lshl_b32 s{t+2}, s{t+2}, 7")
    E(f"s_add_u32 s{t+2}, s{t+2}, {FLAG_OFF}")
    E(f"s_add_u32 s{sF}, s{pWS}, s{t+2}"); E(f"s_addc_u32 s{sF+1}, s{pWS+1}, 0")
    E(f"s_mov_b32 s{sF+2}, 96"); E(f"s_mov_b32 s{sF+3}, 0x20000")
    E(f"s_mov_b32 s{sDBG}, s{pDBG}"); E(f"s_mov_b32 s{sDBG+1}, s{pDBG+1}")
    E(f"s_mov_b32 s{sDBG+2}, 256"); E(f"s_mov_b32 s{sDBG+3}, 0x20000")
    E(f"s_lshr_b32 s{t+2}, s2, 6"); E(f"s_lshl_b32 s{t+2}, s{t+2}, 5"); E(f"s_add_u32 s{t+2}, s{t+2}, s{sJ4}")
    E(f"s_lshl_b32 s{t+2}, s{t+2}, 1"); E(f"s_add_u32 s{t+2}, s{t+2}, s{w}")
    E(f"s_mul_i32 s{sPFO}, s{t+2}, 5120"); E(f"s_mul_i32 s{sPFD}, s{t+2}, 2240")
    E(f"s_mul_i32 s{t+2}, s{sQ}, {1024*1280}"); E(f"s_add_u32 s{sPFO}, s{sPFO}, s{t+2}")
    E(f"s_mul_i32 s{t+2}, s{sQ}, 14"); E(f"s_min_u32 s{t+2}, s{t+2}, 40"); E(f"s_mul_i32 s{t+2}, s{t+2}, 40960"); E(f"s_add_u32 s{sPFD}, s{sPFD}, s{t+2}")
    E(f"s_and_b32 s{t+2}, s{sJ4}, 12"); E(f"s_mul_i32 s{t+2}, s{t+2}, 80")
    E(f"s_sub_u32 s{sPFO}, s{sPFO}, s{t+2}"); E(f"s_sub_u32 s{sPFD}, s{sPFD}, s{t+2}")
    E(f"v_lshlrev_b32 v21, 5, v{L}"); E(f"v_add_u32 v21, s{sJ4}, v21")
    E(f"v_mov_b32 v22, 0")
    E(f"buffer_store_dword v22, v21, {sr(sF)}, 0 offen sc1", "CLR")
    E(f"v_mul_u32_u24 v21, 10240, v8"); E(f"v_lshl_add_u32 v21, v3, 6, v21"); E(f"v_lshl_add_u32 v21, v9, 4, v21")
    E(f"s_mul_i32 s{t+2}, s{sQ}, 40960"); E(f"v_add_u32 v21, s{t+2}, v21")
    E(f"v_bfrev_b32 v22, 2")
    E(f"v_cmp_eq_u32 vcc, s{sQ}, v8"); E(f"v_cndmask_b32 v{T+4}, v21, v22, vcc")
    E(f"s_lshl_b32 s{t+2}, s{sQ}, 2"); E(f"s_lshl_b32 s{sMSK}, 0x000f000f, s{t+2}"); E(f"s_not_b32 s{sMSK}, s{sMSK}"); E(f"s_mov_b32 s{sMSK+1}, s{sMSK}")
    E(f"s_mov_b32 s{sPH}, {SLAB_PH}")
    E(f"s_and_b32 s{t+2}, s{w}, 3"); E(f"s_mul_i32 s{t+2}, s{t+2}, {16*1280}")
    for n in range(5):
        d = DA[n] if n < 4 else T + 5
        E(f"v_add_u32 v21, {64*n}, v{L}"); E(f"v_mul_u32_u24 v22, 3277, v21"); E(f"v_lshrrev_b32 v22, 16, v22")
        E(f"v_mul_u32_u24 v23, 20, v22"); E(f"v_sub_u32 v21, v21, v23"); E(f"v_bfe_u32 v23, v22, 2, 1"); E(f"v_xor_b32 v21, v21, v23")
        E(f"v_mul_u32_u24 v22, 1280, v22"); E(f"v_lshl_add_u32 v21, v21, 4, v22")
        E(f"s_sub_u32 s{t+3}, s{t+2}, {1024*(n%3)}"); E(f"v_add_u32 v{d}, s{t+3}, v21")
        if cfg.get("alin") == 1:
            E(f"s_and_b32 s{t+3}, s{sJ4}, 12"); E(f"s_mul_i32 s{t+3}, s{t+3}, {5120-80}")
            E(f"v_lshl_add_u32 v{d}, v{L}, 4, s{t+3}"); E(f"s_lshr_b32 s{t+3}, s{t+2}, 2"); E(f"v_add_u32 v{d}, s{t+3}, v{d}")
            E(f"v_add_u32 v{d}, {3072 if n >= 3 else 0}, v{d}")
        if cfg.get("alin") == 2:
            E(f"s_and_b32 s{t+3}, s{sJ4}, 4"); E(f"s_lshl_b32 s{t+3}, s{t+3}, 4")
            if n < 4:
                E(f"v_lshrrev_b32 v21, 4, v{L}"); E(f"v_add_u32 v21, {4*n}, v21"); E(f"v_mul_u32_u24 v21, 1280, v21")
                E(f"v_and_b32 v22, 15, v{L}"); E(f"v_lshl_add_u32 v21, v22, 4, v21"); E(f"v_add_u32 v21, s{t+3}, v21")
            else:
                E(f"v_lshrrev_b32 v21, 2, v{L}"); E(f"v_mul_u32_u24 v21, 1280, v21")
                E(f"v_and_b32 v22, 3, v{L}"); E(f"v_lshl_add_u32 v21, v22, 4, v21")
                E(f"s_lshl_b32 s{t+3}, s{t+3}, 2"); E(f"s_sub_u32 s{t+3}, 256, s{t+3}"); E(f"v_add_u32 v21, s{t+3}, v21")
            E(f"s_sub_u32 s{t+3}, s{t+2}, {1024*(n%3)}"); E(f"v_add_u32 v{d}, s{t+3}, v21")
    for r in (SX, SXX, CS): E(f"v_mov_b32 v{r}, 0")

def signal(P, name, ins, tv, val=1):
    lab = f"L_sig_{name}"
    P.E(f"s_cmp_lg_u32 s{sWV}, 0"); P.E(f"s_cbranch_scc1 {lab}")
    P.raw(f"  v_mov_b32 v{tv}, {val}")
    P.raw(f"  s_mov_b64 exec, 1")
    P.raw(f"  {ins}")
    P.raw(f"  s_mov_b64 exec, -1")
    P.label(lab)

def dma_w(s):
    slot = (s % 4) * 16384
    return [f"s_add_u32 m0, s{sM0W}, {slot}",
            (f"buffer_load_dwordx4 v{DW}, {sr(sW)}, s{sWOFF} offen lds", f"W{s}"),
            (f"buffer_load_dwordx4 v{DW+1}, {sr(sW)}, s{sWOFF} offen offset:1024 lds", f"W{s}"),
            f"s_add_u32 s{sWOFF}, s{sWOFF}, s{sPITCH32}"]
def dma_x(xs):
    return [f"s_add_u32 m0, s{sM0X}, {(xs % 2) * 32768}"] + \
           [(f"buffer_load_dwordx4 v{DX+i}, {sr(sX)}, s{sXOFF} offen offset:{1024*i} lds", f"X{xs}") for i in range(4)] + \
           [f"s_add_u32 s{sXOFF}, s{sXOFF}, 128"]
def kslot(c): return LDS_SP if c == 0 else ((c - 1) % 4) * 16384
def vslot(c): return LDS_SP + 16384 if c == 0 else LDS_X + ((c - 1) % 4) * 16384
def dma_k(c):
    return [f"s_add_u32 m0, s{sM0K}, {kslot(c)}",
            (f"buffer_load_dwordx4 v{DK}, {sr(sK)}, s{sKOFF} offen lds", f"K{c}"),
            (f"buffer_load_dwordx4 v{DK+1}, {sr(sK)}, s{sKOFF} offen offset:1024 lds", f"K{c}"),
            f"s_add_u32 s{sKOFF}, s{sKOFF}, 16384"]
def dma_v(c):
    return [f"s_add_u32 m0, s{sM0K}, {vslot(c)}",
            (f"buffer_load_dwordx4 v{DV}, {sr(sV)}, s{sVOFF} offen lds", f"V{c}"),
            (f"buffer_load_dwordx4 v{DV}, {sr(sV)}, s{sVOFF} offen offset:1024 lds", f"V{c}"),
            f"s_add_u32 s{sVOFF}, s{sVOFF}, 16384"]

def afrag(j, n):
    if j == 0:
        b = A0 + 4 * (n % 2); return vr(b, 4), vr(b, 2), vr(b + 2, 2)
    b = AF + 4 * j; return ar(b, 4), ar(b, 2), ar(b + 2, 2)
def rd_a(j, n):
    s = n // 2; off = (s % 4) * 16384 + (n % 2) * 16 * 128
    _, lo, hi = afrag(j, n)
    return [f"ds_read_b64_tr_b16 {lo}, v{AW+j} offset:{off}", f"ds_read_b64_tr_b16 {hi}, v{AW+j} offset:{off+512}"]
def rd_x(n):
    xs = n // 4
    return [f"ds_read_b128 {vr(XF+4*(n%2),4)}, v{AX+n%4} offset:{(xs%2)*32768}"]

def stats(n):
    L = []
    xb = XF + 4 * (n % 2); ab = A0 + 4 * (n % 2)
    for i in range(4):
        L += [f"v_lshlrev_b32 v{T}, 16, v{xb+i}", f"v_and_b32 v{T+1}, s{sMASK}, v{xb+i}",
              f"v_add_f32 v{SX}, v{SX}, v{T}", f"v_fmac_f32 v{SXX}, v{T}, v{T}",
              f"v_add_f32 v{SX}, v{SX}, v{T+1}", f"v_fmac_f32 v{SXX}, v{T+1}, v{T+1}",
              f"v_lshlrev_b32 v{T+2}, 16, v{ab+i}", f"v_and_b32 v{T+3}, s{sMASK}, v{ab+i}",
              f"v_add_f32 v{CS}, v{CS}, v{T+2}", f"v_add_f32 v{CS}, v{CS}, v{T+3}"]
    return L

def phase1(P, cfg):
    E = P.E
    P.wait_vm_tag("X0")
    E("s_barrier")
    P.stamp()
    for x in rd_x(0) + sum((rd_a(j, 0) for j in range(8)), []): E(x)
    for n in range(40):
        s = n // 2
        mf = []
        for j in range(8):
            c = vr(ACC + 16 * j, 16) if n > 0 else "0"
            mf.append(f"v_mfma_f32_32x32x16_bf16 {vr(ACC+16*j,16)}, {afrag(j,n)[0]}, {vr(XF+4*(n%2),4)}, {c}")
        fill = [[] for _ in range(8)]
        pre = []
        if n % 2 == 1 and s + 1 < 20:
            P.wait_vm_tag(f"W{s+1}")
            if n == 15: P.wait_vm_tag("CLR")
            E("s_barrier")
            if n == 15: signal(P, "arr", f"buffer_atomic_add v{T}, off, {sr(sDBG)}, 0 sc1", T)
            if s >= 1:
                if s + 3 < 20: fill[1] += dma_w(s + 3)
                else: fill[1] += dma_k(s + 3 - 19)
            if s == 18: fill[3] += dma_v(1)
        if n + 1 < 40:
            if n % 4 == 3: fill[0].append(lambda t=f"X{(n+1)//4}": P.wait_vm_tag(t))
            fill[0] += rd_x(n + 1) + rd_a(0, n + 1)
            for j in range(1, 8): fill[j] = rd_a(j, n + 1) + fill[j]
        if n % 4 == 3 and n // 4 + 2 < 10: fill[4] += dma_x(n // 4 + 2)
        if n == cfg.get("kv0", 21):
            fill[5] += dma_k(0); fill[6] += dma_v(0)
        if n == 39: fill[0] += [f"v_mov_b32 v{DA[4]}, v{T+5}", f"v_mov_b32 v{RD}, v{T+4}"]
        if not cfg.get("nostats"):
            fill = merge(fill, spread(stats(n), 8))
        weave(P, mf, fill)
```

```python
from p3 import *

def bf16_round(E, dst, src):
    E(f"v_cvt_pk_bf16_f32 v{dst}, v{src}, v{src}")
    E(f"v_and_b32 v{dst}, s{sMASK}, v{dst}")

def epilogue_common(P, cfg):
    E = P.E
    a, b, c = T + 1, T + 2, T + 3
    bf16_round(E, a, CS)
    E(f"v_sub_f32 v{b}, v{CS}, v{a}")
    bf16_round(E, c, b)
    E(f"v_sub_f32 v{T+4}, v{b}, v{c}")
    E(f"v_cvt_pk_bf16_f32 v{A0}, v{a}, v{c}")
    E(f"v_cvt_pk_bf16_f32 v{A0+1}, v{T+4}, 0")
    E(f"v_lshlrev_b32 v{T+4}, 3, v{LANE}")
    E(f"v_add_u32 v{T+5}, s{sM0X}, v{T+4}")
    E(f"ds_write_b64 v{T+5}, {vr(A0,2)} offset:32768")
    E(f"v_mov_b32 v{a}, v{SX}"); E(f"v_mov_b32 v{b}, v{SXX}")
    E(f"v_permlane32_swap_b32 v{a}, v{SX}"); E(f"v_permlane32_swap_b32 v{b}, v{SXX}")
    E(f"v_add_f32 v{SX}, v{SX}, v{a}"); E(f"v_add_f32 v{SXX}, v{SXX}, v{b}")
    E(f"v_mul_f32 v{SX}, {hex(f2u(1/640))}, v{SX}")
    E(f"v_mul_f32 v{SXX}, {hex(f2u(1/640))}, v{SXX}")
    E(f"v_fma_f32 v{SXX}, -v{SX}, v{SX}, v{SXX}")
    E(f"v_max_f32 v{SXX}, 0, v{SXX}")
    P.wait_all(vm=False)
    P.wait_vm_tag("K0")
    E("s_barrier")
    for j in range(8):
        E(f"s_xor_b32 s{sT}, s{sWV}, {j}"); E(f"s_lshl_b32 s{sT}, s{sT}, 12"); E(f"s_add_u32 s{sT}, s{sT}, {LDS_X}")
        E(f"v_add_u32 v{AW+j}, s{sT}, v{T+4}")
        E(f"ds_read_b64 {ar(AF+4*j,2)}, v{AW+j} offset:32768")
    for x in dma_k(3) + dma_v(2) + dma_k(4): emit(P, x)
    E(f"v_cvt_pk_bf16_f32 v{XF}, -v{SX}, -v{SX}")
    E(f"v_mov_b32 v{XF+1}, v{XF}"); E(f"v_mov_b32 v{XF+2}, 0"); E(f"v_mov_b32 v{XF+3}, 0")
    E(f"v_accvgpr_write_b32 a{AF+2}, 0"); E(f"v_accvgpr_write_b32 a{AF+3}, 0")
    bf16_round(E, a, SXX)
    E(f"v_add_f32 v{a}, {hex(f2u(1e-5))}, v{a}")
    bf16_round(E, a, a)
    E(f"v_sqrt_f32 v{a}, v{a}")
    bf16_round(E, a, a)
    E(f"v_rcp_f32 v{T}, v{a}")

def corr_mfma(j):
    return f"v_mfma_f32_32x32x16_bf16 {vr(ACC+16*j,16)}, {ar(AF+4*j,4)}, {vr(XF,4)}, {vr(ACC+16*j,16)}"

def q_epi(QA):
    L = [f"v_mul_f32 v{T+1}, {hex(f2u(LOG2E * 128 ** -0.5))}, v{T}"]
    for i in range(0, 64, 2):
        t = T + 2 + (i // 2) % 2 * 2
        L += [f"v_mul_f32 v{t}, v{T+1}, v{QA+i}", f"v_mul_f32 v{t+1}, v{T+1}, v{QA+i+1}",
              f"v_cvt_pk_bf16_f32 v{t}, v{t}, v{t+1}", f"v_accvgpr_write_b32 a{QF+i//2}, v{t}"]
    return L

def f_epi(FA, cfg, c1, c2, tmp):
    L = [f"v_mul_f32 v{c1}, {hex(f2u(-LOG2E))}, v{T}", f"v_mul_f32 v{c2}, v{T}, v{T}"]
    for j in range(4):
        b = FA + 16 * j
        for r in range(0, 8, 2):
            t0, t1 = tmp[0], tmp[1]
            L += [f"v_mul_f32 v{t0}, v{c1}, v{b+r}", f"v_mul_f32 v{t1}, v{c1}, v{b+r+1}",
                  f"v_exp_f32 v{t0}, v{t0}", f"v_exp_f32 v{t1}, v{t1}",
                  f"v_mul_f32 v{b+r}, v{b+r}, v{b+8+r}", f"v_mul_f32 v{b+r+1}, v{b+r+1}, v{b+9+r}",
                  f"v_add_f32 v{t0}, 1.0, v{t0}", f"v_add_f32 v{t1}, 1.0, v{t1}",
                  f"v_rcp_f32 v{t0}, v{t0}", f"v_rcp_f32 v{t1}, v{t1}",
                  f"v_mul_f32 v{b+r}, v{c2}, v{b+r}", f"v_mul_f32 v{b+r+1}, v{c2}, v{b+r+1}",
                  f"v_mul_f32 v{t0}, v{t0}, v{b+r}", f"v_mul_f32 v{t1}, v{t1}, v{b+r+1}",
                  f"v_cvt_pk_bf16_f32 v{b+8+r//2}, v{t0}, v{t1}"]
        L.append((f"buffer_store_dwordx4 {vr(b+8,4)}, v{VST}, {sr(sH)}, s{sHO+j} offen sc1", "H"))
    return L

def kaddr_off(c): return 0 if c == 0 else kslot(c)
def vaddr_off(c): return 0 if c == 0 else vslot(c) - LDS_X
class Seq:
    pass

def attn_items(S, O):
    ops = []
    def qk(c):
        Sb = S[c % 2]
        for i in range(16):
            kt, s = i % 2, i // 2
            d = vr(Sb + 16 * kt, 16)
            cc = d if s > 0 else ("0" if c == 0 else vr(NEGM, 16))
            ops.append(("QK", c, i,
                        lambda f, d=d, cc=cc, s=s: f"v_mfma_f32_32x32x16_bf16 {d}, {ar(f,4)}, {ar(QF+4*s,4)}, {cc}",
                        lambda f, s=s, kt=kt, c=c: [f"ds_read_b128 {ar(f,4)}, v{AK+s} offset:{kaddr_off(c)+8192*kt}"]))
    def pv(c):
        for i in range(16):
            u, dt = (i // 4, i % 4) if c < 7 else (i % 4, i // 4)
            d = vr(O + 16 * dt, 16)
            cc = d if (c > 0 or u > 0) else "0"
            ops.append(("PV", c, i,
                        lambda f, d=d, cc=cc, u=u: f"v_mfma_f32_32x32x16_bf16 {d}, {ar(f,4)}, {vr(PP+4*u,4)}, {cc}",
                        lambda f, u=u, dt=dt, c=c: [f"ds_read_b64_tr_b16 {ar(f,2)}, v{AV+dt} offset:{vaddr_off(c)+4096*u}",
                                                    f"ds_read_b64_tr_b16 {ar(f+2,2)}, v{AV+dt} offset:{vaddr_off(c)+4096*u+2048}"]))
    qk(0)
    for c in range(8):
        if c < 7: qk(c + 1)
        pv(c)
    return ops

def softmax(Sb, first):
    L = []; W = []
    for i in range(0, 32, 2):
        t = T + (i // 2) % 2 * 2
        L += [f"v_exp_f32 v{t}, v{Sb+i}", f"v_exp_f32 v{t+1}, v{Sb+i+1}"]; W += [2, 2]
        if i == 0: L += [f"v_add_f32 v{LC}, v{t}, v{t+1}"]; W += [1]
        else: L += [f"v_add_f32 v{LC}, v{LC}, v{t}", f"v_add_f32 v{LC}, v{LC}, v{t+1}"]; W += [1, 1]
        L += [f"v_cvt_pk_bf16_f32 v{PP+i//2}, v{t}, v{t+1}"]; W += [1]
    return L, W

def rowmax(Sb, dst, tmp):
    L = [f"v_max3_f32 v{dst}, v{Sb}, v{Sb+1}, v{Sb+2}"]
    for i in range(3, 31, 2): L.append(f"v_max3_f32 v{dst}, v{dst}, v{Sb+i}, v{Sb+i+1}")
    L.append(f"v_max_f32 v{dst}, v{dst}, v{Sb+31}")
    L += [f"v_mov_b32 v{tmp}, v{dst}", f"v_permlane32_swap_b32 v{tmp}, v{dst}", f"v_max_f32 v{dst}, v{dst}, v{tmp}"]
    return L

def attention(P, g, cfg, fallbacks, slow):
    E = P.E
    QA = 64 * g; FA = 64 * (1 - g)
    S = [QA, QA + 32]; O = FA
    qj = range(4 * g, 4 * g + 4); fj = range(4 * (1 - g), 4 * (1 - g) + 4)
    for j in list(qj) + list(fj): E(corr_mfma(j))
    ops = attn_items(S, O)
    NF = 8; LEAD = 8
    for x in q_epi(QA): E(x)
    for k in range(LEAD):
        for x in ops[k][4](AF + 4 * (k % NF)): E(x)
    for x in f_epi(FA, cfg, AW, AW + 1, (AW + 2, AW + 3)): emit(P, x)
    R = R3(g)
    def onorm(dt):
        b = O + 16 * dt
        L = []
        for i in range(8):
            L += [f"v_mul_f32 v{b+2*i}, v{LS}, v{b+2*i}", f"v_mul_f32 v{b+2*i+1}, v{LS}, v{b+2*i+1}",
                  f"v_cvt_pk_bf16_f32 v{b+i}, v{b+2*i}, v{b+2*i+1}"]
        return L
    def ostore(dt):
        b = O + 16 * dt
        return [(f"buffer_store_dwordx4 {vr(b+4*uu,4)}, v{VST}, {sr(sO)}, s{sOO+dt} offen offset:{512*uu} sc1", f"O{dt}") for uu in range(2)]
    k = 0
    P.stamp()
    while k < len(ops):
        ph, c, _, _, _ = ops[k]
        seg = ops[k:k + 16]
        mf = [o[3](AF + 4 * ((k + i) % NF)) for i, o in enumerate(seg)]
        fill = [[] for _ in range(16)]
        for i in range(16):
            nk = k + i + LEAD
            if nk < len(ops):
                pre = []
                nph, nc, ni = ops[nk][:3]
                if ni == 0:
                    if nph == "QK":
                        pre.append(lambda nc=nc: (P.wait_vm_tag(f"K{nc}"), P.wait_vm_tag(f"V{nc-1}"), nc == 3 and P.wait_vm_tag("H"), E("s_barrier")))
                        if nc == 3 and g == 0:
                            pre.append(lambda: signal(P, "h", f"buffer_store_dword v{T+4}, off, {sr(sF)}, s{sJ4} sc1", T + 4))
                        if nc == 1: pre += [f"v_subrev_u32 v{AK+s}, {LDS_SP}, v{AK+s}" for s in range(8)]
                        post = []
                        if nc >= 2 and nc + 3 < 8: post += dma_k(nc + 3)
                        if nc == 1: post += dma_v(3) + dma_v(4)
                        if nc >= 4 and nc + 1 < 8: post += dma_v(nc + 1)
                        if nc == 4: fill = merge(fill, spread(p3_setup1(), 16, start=i + 2))
                        if nc == 4: post = post + poll_cnt()
                        if nc == 5: post = [lambda: poll_check(P, f"c{g}", poll_cnt()[0], 256, 1, slow)] + poll_flags() + post
                        if nc == 6: post = post + [lambda: poll_check(P, f"h{g}", poll_flags()[0], 1, 0xff, slow)] + ([] if cfg.get("nopfh") else p3_prefetch_h())
                        if nc == 7:
                            D = p3_dma_a(g, 0) + p3_dma_b(g, 0) + p3_dma_a(g, 1) + p3_dma_b(g, 1)
                            fill = merge(fill, spread(D, 16, start=i + 2))
                        if i + 1 < 16: fill[i + 1] += post
                        else: raise ValueError
                    elif nc == 7:
                        pre.append(lambda: (P.wait_vm_tag("V7"), P.wait_vm_tag("S0"), E("s_barrier")))
                        if g == 0: pre.append(lambda: signal(P, "arr2", f"buffer_atomic_add v{T+4}, off, {sr(sDBG)}, 0 offset:128 sc1", T + 4))
                        fill = merge(fill, spread(p3_setup2(R) + p3_dma_a(g, 2) + p3_dma_b(g, 2), 16, start=i + 1))
                    if nph == "PV" and nc == 1:
                        pre += [f"v_subrev_u32 v{AV+d}, {LDS_SP+16384-LDS_X}, v{AV+d}" for d in range(4)]
                fill[i] = pre + ops[nk][4](AF + 4 * (nk % NF)) + fill[i]
        sm_c = None
        if ph == "QK" and c >= 1:
            sm_c = c - 1
            L, W = softmax(S[sm_c % 2], False)
            fill = merge(fill, spread(L, 16, W))
        if ph == "PV" and c == 7:
            sm_c = 7
            L, W = softmax(S[1], False)
            for x in L: E(x)
            check(P, g, 7, S, O, fallbacks)
            sm_c = None
            fill[0] += [f"v_mov_b32 v{T}, v{LS}"]
            fill[1] += [f"v_permlane32_swap_b32 v{T}, v{LS}", f"v_add_f32 v{LS}, v{LS}, v{T}"]
            fill[2] += [f"v_rcp_f32 v{LS}, v{LS}"]
            rd = p3_reads(R, g, 0)
            fill = merge(fill, spread(sum(rd[:8], []), 16, start=2, end=12))
            for i in range(6): fill[8 + i] += rd[8 + i]
            for dt in range(3): fill = merge(fill, spread(onorm(dt) + (ostore(dt) if dt < cfg.get('opv', 3) else []), 16, start=4 * dt + 5, end=min(16, 4 * dt + 9)))
        if ph == "PV" and c < 5 and not cfg.get("noclr"):
            fill[0] += [f"v_mov_b32 v{T+1+i}, -1" for i in range(4)]
            fill = merge(fill, spread([p3_clear(k_) for k_ in range(10) if k_ % 5 == c], 16, start=1, end=8))
        if ph == "PV" and c < 5 and not cfg.get("nopf"):
            fill = merge(fill, spread(p3_prefetch("d" if c == 0 else "o", [3, 2, 1, 1, 1][c], LDS_SP if c < 3 else 48 * 1024), 16, start=11, end=16))
        weave(P, mf, fill)
        if ph == "QK" and c == 0:
            for x in rowmax(S[0], T + 4, T + 5): E(x)
            for i in range(16): E(f"v_sub_f32 v{NEGM+i}, 0, v{T+4}")
            for i in range(32): E(f"v_sub_f32 v{S[0]+i}, v{S[0]+i}, v{T+4}")
            E(f"v_mov_b32 v{LS}, 0")
        if sm_c is not None: check(P, g, sm_c, S, O, fallbacks)
        k += 16
        if (ph, c) in (("PV", 7),): P.stamp()
    phase3(P, R, g, cfg, slow, onorm(3), ostore)
    P.stamp_flush(0, 98, sWV, sK, T, T + 1)
    E("s_endpgm")

def check(P, g, c, S, O, fallbacks):
    E = P.E
    if c > 0:
        E(f"v_cmp_nle_f32 vcc, v{LC}, s{sTHR}")
        E(f"s_cbranch_vccnz L_fb_{g}_{c}")
        P.label(f"L_ret_{g}_{c}")
        fallbacks.append((g, c, S, O))
    E(f"v_add_f32 v{LS}, v{LS}, v{LC}")

def fallback(P, g, c, S, O):
    P.lg = []; P.vm = []; P.hist = []
    E = P.E
    P.label(f"L_fb_{g}_{c}")
    P.nop(16)
    Sb = S[c % 2]; Sn = S[(c + 1) % 2]
    for x in rowmax(Sb, T + 4, T + 5): E(x)
    E(f"v_max_f32 v{T+4}, 0, v{T+4}")
    E(f"v_exp_f32 v{T+5}, -v{T+4}")
    for i in range(16): E(f"v_sub_f32 v{NEGM+i}, v{NEGM+i}, v{T+4}")
    for i in range(32): E(f"v_sub_f32 v{Sb+i}, v{Sb+i}, v{T+4}")
    if c < 7:
        for i in range(32): E(f"v_sub_f32 v{Sn+i}, v{Sn+i}, v{T+4}")
    for i in range(64): E(f"v_mul_f32 v{O+i}, v{T+5}, v{O+i}")
    E(f"v_mul_f32 v{LS}, v{T+5}, v{LS}")
    for x in softmax(Sb, False)[0]: E(x)
    P.nop(4)
    E(f"s_branch L_ret_{g}_{c}")

def gen_k1(name, cfg):
    P = Prog()
    P.raw(f".globl {name}\n.p2align 8\n.type {name},@function\n{name}:")
    if cfg.get("ts"):
        P.ts = {"n": 0, "regs": [100, 66, 8, 10, 12, 14, 80, 82, 28, 30, 52, 54, 20, 22]}
        P.stamp(); P.stamp(True)
    prologue(P, cfg)
    BFLAG[0] = cfg.get('bflag', ' sc1'); AFLAG[0] = cfg.get('aflag', ''); AFLAG[1] = cfg.get('ard', 0)
    P.E(f"s_mov_b32 s{sTHR}, {hex(f2u(2.0**30))}")
    phase1(P, cfg)
    P.stamp()
    epilogue_common(P, cfg)
    P.E(f"s_cmp_ge_u32 s{sWV}, 4")
    P.E("s_cbranch_scc1 L_grpB")
    st = P.state()
    fb = []; slow = []
    attention(P, 0, cfg, fb, slow)
    P.label("L_grpB")
    P.set_state(st)
    attention(P, 1, cfg, fb, slow)
    for f in fb: fallback(P, *f)
    for f in slow: f()
    P.label("L_k1_end")
    P.raw("  s_endpgm")
    desc = f""".amdhsa_kernel {name}
  .amdhsa_next_free_vgpr {NV+NA}
  .amdhsa_next_free_sgpr 102
  .amdhsa_accum_offset {NV}
  .amdhsa_group_segment_fixed_size 0
  .amdhsa_kernarg_size 96
  .amdhsa_user_sgpr_count 2
  .amdhsa_user_sgpr_kernarg_segment_ptr 1
  .amdhsa_system_sgpr_workgroup_id_x 1
.end_amdhsa_kernel
"""
    return P, desc
```

```python
from k1 import *

NST = 23
BSLOT = [0, 16384, 32768, 68 * 1024]
ASLOT = [120 * 1024, 140 * 1024, 48 * 1024, 84 * 1024]
RBASE = [0, 48 * 1024]
ABASE = [48 * 1024, 112 * 1024]
SPIN = 20000

class R3:
    def __init__(self, g):
        QA = 64 * g; FA = 64 * (1 - g)
        self.ACCF = QA; self.ACCS = FA
        f1 = [QA + 40 + 4 * i for i in range(6)] + [128 + 4 * i for i in range(8)]
        f0 = [32 + 4 * i for i in range(8)] + [4 * i for i in range(6)]
        self.fr = lambda buf, i: ar(f0[i], 4) if buf == 0 else vr(f1[i], 4)
        self.frh = lambda buf, i, e: ar(f0[i] + 2 * e, 2) if buf == 0 else vr(f1[i] + 2 * e, 2)
        self.RA = AK; self.RB = AK + 4; self.VO = AK + 6
        self.XS = FA + 40
        self.T = T

def p3_setup1():
    w = sWV; t = sT
    return [f"s_mul_i32 s{t}, s{sQ}, 14", f"s_min_u32 s{t}, s{t}, 40", f"s_mul_i32 s{sAo}, s{t}, 40960",
            f"s_add_u32 s{t}, s{t}, 128", f"s_lshl_b32 s{sBo}, s{t}, 13",
            f"v_lshlrev_b32 v{DB}, 4, v{LANE}", f"v_add_u32 v{DB}, s{sM0K}, v{DB}",
            f"s_and_b32 s{t}, s{w}, 3", f"s_mul_i32 s{sMH}, s{t}, 5120",
            f"v_and_b32 v{FL}, 31, v{LANE}", f"v_lshlrev_b32 v{FL}, 2, v{FL}"]

def p3_setup2(R):
    t = sT; a = R.RA; v = R.VO
    return [f"v_lshlrev_b32 v{R.RB}, 4, v{LANE}",
            f"s_and_b32 s{t}, s{sWV}, 3", f"s_lshl_b32 s{t}, s{t}, 11",
            f"v_add_u32 v{R.RB}, s{t}, v{R.RB}", f"v_add_u32 v{R.RB+1}, {RBASE[1]}, v{R.RB}",
            f"v_bfe_u32 v{a}, v{LANE}, 2, 3", f"v_lshrrev_b32 v{a+1}, 5, v{LANE}", f"v_lshl_add_u32 v{a}, v{a+1}, 4, v{a}",
            f"v_mul_u32_u24 v{a}, 320, v{a}",
            f"v_bfe_u32 v{a+1}, v{LANE}, 4, 1", f"v_and_b32 v{a+2}, 3, v{LANE}", f"v_xor_b32 v{a+1}, v{a+1}, v{a+2}",
            f"v_lshl_add_u32 v{a}, v{a+1}, 4, v{a}", f"v_and_b32 v{a+2}, 1, v{LANE}", f"v_lshl_add_u32 v{a}, v{a+2}, 3, v{a}",
            f"v_add_u32 v{a+2}, {ABASE[1]}, v{a}", f"v_add_u32 v{a}, {ABASE[0]}, v{a}",
            f"v_xor_b32 v{a+3}, 8, v{a+2}", f"v_xor_b32 v{a+1}, 8, v{a}"]

def p3_setup3(R, g):
    t = sT; u = sSP; v = R.T
    return [f"s_lshl_b32 s{t}, s{sR_}, 8", f"s_lshr_b32 s{u}, s{sJ4}, 4", f"s_lshl_b32 s{u}, s{u}, 7", f"s_add_u32 s{t}, s{t}, s{u}",
            f"s_and_b32 s{u}, s{sWV}, 3", f"s_lshl_b32 s{u}, s{u}, 5", f"s_add_u32 s{t}, s{t}, s{u}",
            f"s_lshl_b32 s{u}, s{sQ}, 2", f"s_add_u32 s{t}, s{t}, s{u}", f"s_mul_i32 s{t}, s{t}, 1280",
            f"s_and_b32 s{u}, s{sJ4}, 12", f"s_mul_i32 s{u}, s{u}, 80", f"s_add_u32 s{t}, s{t}, s{u}",
            f"v_bfe_u32 v{v}, v{LANE}, 3, 1", f"v_and_b32 v{v+1}, 3, v{LANE}", f"v_lshl_add_u32 v{v}, v{v}, 4, v{v+1}",
            f"v_mul_u32_u24 v{v}, 1280, v{v}", f"v_lshrrev_b32 v{v+2}, 4, v{LANE}",
            f"v_lshl_add_u32 v{v}, v{v+2}, 4, v{v}", f"v_add_u32 v{v}, s{t}, v{v}",
            f"v_bfe_u32 v{v+3}, v{LANE}, 2, 1",
            f"v_lshl_add_u32 v{R.VO}, v{v+3}, 6, v{v}", f"v_lshl_add_u32 v{R.VO+1}, v{v+3}, 2, v{v}",
            f"v_and_b32 v{v+3}, 1, v{v+2}", f"v_xor_b32 v{v+3}, {g}, v{v+3}", f"v_lshl_add_u32 v{R.VO+1}, v{v+3}, 3, v{R.VO+1}",
            f"v_bfe_u32 v{v+3}, v{LANE}, 2, 2", f"v_mul_u32_u24 v{v}, 40960, v{v+3}", f"v_lshl_add_u32 v{v}, v{v+2}, 6, v{v}",
            f"v_lshl_add_u32 v{v}, v{v+1}, 4, v{v}", f"s_mul_i32 s{u}, s{sQ}, 10240", f"v_add_u32 v{v}, s{u}, v{v}",
            f"v_bfrev_b32 v{v+1}, 2", f"v_cmp_eq_u32 vcc, s{sQ}, v{v+3}", f"v_cndmask_b32 v{WR}, v{v}, v{v+1}, vcc"]

AFLAG = ['', 0]
def p3_dma_a(g, st):
    L = []
    if st == 7: L += [f"s_mul_i32 s{sAo}, s{sQ}, {1024*1280}", f"s_and_b32 s{sML}, s{sWV}, 2", f"s_mul_i32 s{sML}, s{sML}, {48*1280}",
                      f"s_add_u32 s{sAo}, s{sAo}, s{sML}"]
    heavy = (st % 2) == g
    L += [f"s_add_u32 m0, s{sMH}, {ASLOT[st%4] + (0 if heavy else 3072)}"]
    L += [(f"buffer_load_dwordx4 v{DA[n]}, {sr(sA3f if st < 7 else sA3s)}, s{sAo} offen offset:{1024*(n%3)}{AFLAG[0]} lds", f"S{st}") for n in ((0, 1, 2) if heavy else (3, 4))]
    if st < 6: L += [f"s_add_u32 s{sAo}, s{sAo}, {64*1280}"]
    elif st >= 7 and (st - 7) % 4 < 3: L += [f"s_add_u32 s{sAo}, s{sAo}, {256*1280}"]
    elif 7 <= st < NST - 1: L += [f"s_sub_u32 s{sAo}, s{sAo}, {736*1280}"]
    return L
def p3_prefetch(which, n, lds):
    v = T + 5; so_ = sPFO if which == "o" else sPFD
    L = [f"v_lshl_add_u32 v{v}, v{LANE}, 4, s{so_}", f"s_mov_b32 m0, {lds}"]
    L += [(f"buffer_load_dwordx4 v{v}, {sr(sA3s if which == 'o' else sA3f)}, 0 offen offset:{1024*i} lds", "PF") for i in range(n)]
    return L + [f"s_add_u32 s{so_}, s{so_}, {1024*n}"]
def p3_prefetch_h():
    t = sT
    return [f"s_and_b32 s{t}, s{sJ4}, 12", f"s_lshl_b32 s{t}, s{t}, 12", f"s_add_u32 s{t}, s{t}, {3*16384}", f"s_add_u32 s{t}, s{t}, s{sBo}",
            f"s_add_u32 m0, s{sM0K}, {48*1024}"] + \
           [(f"buffer_load_dwordx4 v{DB}, {sr(sB3)}, s{t} offen offset:{1024*i} sc1 lds", "PF") for i in range(2)]
BFLAG = [' sc1']
def p3_dma_b(g, st):
    L = []
    if st == 7: L += [f"s_lshl_b32 s{sBo}, s{sQ}, 18"]
    if BFLAG[0] == "hit": return [f"s_add_u32 m0, s{sM0K}, {BSLOT[st%4]}"] + [(f"buffer_load_dwordx4 v{DB}, {sr(sA3s)}, s{sAo} offen offset:{1024*i} lds", f"S{st}") for i in range(2)]
    L += [f"s_add_u32 m0, s{sM0K}, {BSLOT[st%4]}"]
    L += [(f"buffer_load_dwordx4 v{DB}, {sr(sB3)}, s{sBo} offen offset:{1024*i}{BFLAG[0]} lds", f"S{st}") for i in range(2)]
    L += [f"s_add_u32 s{sBo}, s{sBo}, 16384"]
    return L

def p3_reads(R, g, st):
    s4 = st % 4
    hb = 1 if BSLOT[s4] >= 65536 else 0; ha = 1 if ASLOT[s4] >= ABASE[1] else 0
    L = []
    for u in range(2):
        for mi in range(2): L.append([f"ds_read_b128 {R.fr(st%2, 7*u+mi)}, v{R.RB+hb} offset:{BSLOT[s4]-RBASE[hb]+8192*u+1024*mi}"])
        for ni in range(5):
            gam, p = (2 * g + ni // 2, ni % 2) if ni < 4 else (4, g)
            if AFLAG[1] == 1:
                L.append([f"ds_read_b128 {R.fr(st%2, 7*u+2+ni)}, v{R.RB+1} offset:{(ASLOT[s4]-RBASE[1])%32768+5120*u+1024*ni}"]); continue
            if AFLAG[1] == 2:
                L.append([f"ds_read_b64 {R.frh(st%2, 7*u+2+ni, e)}, v{R.RA+2*ha+p} offset:{ASLOT[s4]-ABASE[ha]+10240*u+2560*e+64*gam}" for e in range(2)]); continue
            L.append([f"ds_read_b64_tr_b16 {R.frh(st%2, 7*u+2+ni, e)}, v{R.RA+2*ha+p} offset:{ASLOT[s4]-ABASE[ha]+10240*u+2560*e+64*gam}" for e in range(2)])
    return L

def p3_mfma(R, st):
    acc = R.ACCF if st < 7 else R.ACCS
    L = []
    for u in range(2):
        for ni in range(5):
            for mi in range(2):
                d = vr(acc + 20 * mi + 4 * ni, 4)
                first = st in (0, 7) and u == 0
                L.append(f"v_mfma_f32_16x16x32_bf16 {d}, {R.fr(st%2, 7*u+2+ni)}, {R.fr(st%2, 7*u+mi)}, {'0' if first else d}")
    return L

def so(ph): return "0" if ph == 0 else f"s{sPH}"
def p3_cvt(acc): return [f"v_cvt_pk_bf16_f32 v{acc+i}, v{acc+2*i}, v{acc+2*i+1}" for i in range(20)]
def p3_store(acc, ph, i): return f"buffer_store_dwordx4 {vr(acc+4*i,4)}, v{WR}, {sr(sP3)}, {so(ph)} offen offset:{256*i} sc1"
def p3_clear(k): return (f"buffer_store_dwordx4 {vr(T+1,4)}, v{RD}, {sr(sP3)}, {so(k//5)} offen offset:{256*(k%5)} sc1", "CLR2")
def p3_loads(acc, ph, which=range(5)):
    return [f"buffer_load_dwordx4 {vr(acc+4*i,4)}, v{RD}, {sr(sP3)}, {so(ph)} offen offset:{256*i} sc1" for i in which]
def p3_gather(P, acc, ph, which=range(5)):
    P.E(f"s_mov_b64 exec, s[{sMSK}:{sMSK+1}]")
    for x in p3_loads(acc, ph, which): P.E(x)
    P.E("s_mov_b64 exec, -1")
def p3_maxtree(R, acc):
    G = acc
    L = [f"v_max3_u32 v{R.T}, v{G}, v{G+1}, v{G+2}"]
    for i in range(3, 19, 2): L.append(f"v_max3_u32 v{R.T}, v{R.T}, v{G+i}, v{G+i+1}")
    L.append(f"v_max_u32 v{R.T}, v{R.T}, v{G+19}")
    L.append(f"v_cmp_eq_u32 vcc, -1, v{R.T}")
    return L
def p3_xswap(P, R):
    P.E(f"v_mov_b32 v{R.T+5}, v{R.XS}")
    P.E(f"s_mov_b32 exec_lo, s{sMASK}"); P.E(f"s_mov_b32 exec_hi, s{sMASK}")
    P.E(f"v_swap_b32 v{R.XS}, v{R.XS+2}"); P.E(f"v_swap_b32 v{R.XS+1}, v{R.XS+3}")
    P.E("s_mov_b64 exec, -1")
def p3_check(P, R, g, acc, ph, slow):
    for x in p3_maxtree(R, acc): P.E(x)
    P.E(f"s_cbranch_vccnz L_p3_spin_{g}_{ph}")
    P.label(f"L_p3_ok_{g}_{ph}")
    def spin():
        P.label(f"L_p3_spin_{g}_{ph}")
        P.raw(f"  s_mov_b32 s{sSP}, {SPIN}")
        P.label(f"L_p3_spl_{g}_{ph}")
        P.raw(f"  s_sleep 1")
        P.raw(f"  s_mov_b64 exec, s[{sMSK}:{sMSK+1}]")
        for x in p3_loads(acc, ph): P.raw("  " + x)
        P.raw("  s_mov_b64 exec, -1")
        P.raw(f"  s_waitcnt vmcnt(0)")
        for x in p3_maxtree(R, acc): P.raw("  " + x)
        P.raw(f"  s_sub_u32 s{sSP}, s{sSP}, 1")
        P.raw(f"  s_cmp_eq_u32 s{sSP}, 0")
        P.raw(f"  s_cbranch_scc1 L_p3_ok_{g}_{ph}")
        P.raw(f"  s_nop 2")
        P.raw(f"  s_cbranch_vccnz L_p3_spl_{g}_{ph}")
        P.raw(f"  s_branch L_p3_ok_{g}_{ph}")
    slow.append(spin)

RES = list(range(8)) + [16, 17]
def p3_combine(R, acc):
    L = []
    for p in range(19, -1, -1):
        L += [f"v_and_b32 v{acc+2*p+1}, s{sMASK}, v{acc+p}", f"v_lshlrev_b32 v{acc+2*p}, 16, v{acc+p}"]
    K = list(range(19, -1, -1))
    L += [f"v_add_f32_dpp v{acc+k}, v{acc+k}, v{acc+k} row_ror:8 row_mask:0xf bank_mask:0x3" for k in K]
    L += [f"v_add_f32_dpp v{acc+k}, v{acc+20+k}, v{acc+20+k} row_ror:8 row_mask:0xf bank_mask:0xc" for k in K]
    pairs = [(17, 19), (16, 18)] + [(k, k + 8) for k in range(7, -1, -1)]
    L += [f"v_add_f32_dpp v{acc+a}, v{acc+a}, v{acc+a} row_shl:4 row_mask:0xf bank_mask:0x5" for a, b in pairs]
    L += [f"v_add_f32_dpp v{acc+a}, v{acc+b}, v{acc+b} row_shr:4 row_mask:0xf bank_mask:0xa" for a, b in pairs]
    return L

def poll_flags(): return [f"buffer_load_dword v{PL}, v{FL}, {sr(sF)}, 0 offen sc1"]
def poll_cnt(o=0, PL=PL): return [f"buffer_load_dword v{PL}, off, {sr(sDBG)}, 0 offset:{o} sc1"]
def poll_check(P, name, load, val, mask, slow, cmp="ne", PL=PL):
    def test(em):
        em(f"v_cmp_{cmp}_u32 vcc, {val}, v{PL}")
        em(f"s_and_b32 s{sT}, vcc_lo, {hex(mask)}")
    test(P.E)
    P.E(f"s_cbranch_scc1 L_spin_{name}")
    P.label(f"L_ok_{name}")
    def spin():
        P.label(f"L_spin_{name}")
        P.raw(f"  s_mov_b32 s{sSP}, {SPIN}")
        P.label(f"L_spl_{name}")
        P.raw(f"  s_sleep 1")
        P.raw("  " + load)
        P.raw(f"  s_sub_u32 s{sSP}, s{sSP}, 1")
        P.raw(f"  s_cmp_eq_u32 s{sSP}, 0")
        P.raw(f"  s_waitcnt vmcnt(0)")
        P.raw(f"  s_cbranch_scc1 L_ok_{name}")
        P.raw(f"  v_cmp_{cmp}_u32 vcc, {val}, v{PL}")
        P.raw(f"  s_nop 4")
        P.raw(f"  s_and_b32 s{sT}, vcc_lo, {hex(mask)}")
        P.raw(f"  s_cbranch_scc1 L_spl_{name}")
        P.raw(f"  s_branch L_ok_{name}")
    slow.append(spin)

def phase3(P, R, g, cfg, slow, tail, ostore):
    E = P.E
    FS = dict(cfg.get("fs", [(8 + i, [i]) for i in range(5)])); GL = dict(cfg.get("gl", [(14 + i, [i]) for i in range(5)]))
    CF = cfg.get("cf", 20); CE = cfg.get("ce", NST + 1)
    OST = dict(cfg.get("ost", [(1, 3)]))
    SIG = dict(cfg.get("sig", [(3, 4)]))
    CHK = dict(cfg.get("chk", [(5, 4)]))
    POL = cfg.get("pol", [4])
    have = 0; nb = 3
    for t in range(1, NST + 1):
        if t < NST:
            P.wait_all(vm=False)
            P.wait_vm_tag(f"S{t}")
            if t in SIG: P.wait_vm_tag(f"O{SIG[t]-1}")
            E("s_barrier")
            if t in SIG and g == 0: signal(P, f"o{t}", f"buffer_store_dword v{R.T+4}, off, {sr(sF)}, s{sJ4} offset:32 sc1", R.T + 4, SIG[t])
        if t in cfg.get('st', (2, 8, 16)): P.stamp()
        mf = p3_mfma(R, t - 1)
        fill = [[] for _ in range(20)]
        if t == 1: fill = merge(fill, spread(tail, 20, end=8))
        if t < NST: fill = merge(fill, spread(sum(p3_reads(R, g, t), []), 20, end=cfg.get("re", 15)))
        if t in CHK:
            have = CHK[t]
            fill[0].append(lambda: poll_check(P, f"o{g}_{t}", poll_flags()[0], have, 0xff00, slow, "gt"))
        D = []
        while nb <= min(t + 3, NST - 1) and (nb < 7 or (nb - 7) // 4 < have):
            D += p3_dma_b(g, nb); nb += 1
            if t == 1 and nb == 4: D += p3_dma_a(g, 3)
        if t + 3 < NST: D += p3_dma_a(g, t + 3)
        d0 = cfg.get("d0", 1); d1 = cfg.get("d1", 13)
        if t == 1: d0 = cfg.get("d01", 9); d1 = 19
        fill = merge(fill, spread(D, 20, start=d0, end=d1))
        if t in POL: fill[d1] += poll_flags()
        if t == 5: fill[d1] += poll_cnt(128, R.T + 5)
        if t in OST: fill[d1 if t > 1 else 8] += ostore(OST[t])
        if t == 2: fill = merge(fill, spread(p3_setup3(R, g), 20))
        if t == 8: fill[1].append(lambda: poll_check(P, f"d{g}", poll_cnt(128, R.T + 5)[0], 256, 1, slow, "ne", R.T + 5))
        if t == 8: fill = merge(fill, spread(p3_cvt(R.ACCF), 20, start=2, end=13))
        nox = cfg.get("nox", 0)
        if t in FS and not nox: fill[d1] += [p3_store(R.ACCF, 0, i) for i in FS[t]]
        if t in GL and not nox: fill[d1].append(lambda: p3_gather(P, R.ACCF, 0, GL[t]))
        if t == cfg.get("xl", 19):
            fill[d1] += [f"buffer_load_dwordx4 {vr(R.XS,4)}, v{R.VO}, {sr(sXO)}, 0 offen offset:{128*g}",
                         f"buffer_load_dword v{R.XS+4}, v{R.VO+1}, {sr(sXO)}, 0 offen offset:256"]
        if t == 23: fill[10].append(lambda: p3_xswap(P, R))
        if t == CF and not nox: fill[0].append(lambda: p3_check(P, R, g, R.ACCF, 0, slow))
        if CF <= t < CE and nox < 2:
            L = p3_combine(R, R.ACCF)
            for i0 in range(0, 10, 2):
                r0, r1 = R.ACCF + RES[i0], R.ACCF + RES[i0 + 1]; t0, t1 = R.T, R.T + 1
                L += [f"v_mul_f32 v{t0}, {hex(f2u(-LOG2E))}, v{r0}", f"v_mul_f32 v{t1}, {hex(f2u(-LOG2E))}, v{r1}",
                      f"v_exp_f32 v{t0}, v{t0}", f"v_exp_f32 v{t1}, v{t1}", f"v_add_f32 v{t0}, 1.0, v{t0}", f"v_add_f32 v{t1}, 1.0, v{t1}",
                      f"v_rcp_f32 v{t0}, v{t0}", f"v_rcp_f32 v{t1}, v{t1}", f"v_mul_f32 v{r0}, v{t0}, v{r0}", f"v_mul_f32 v{r1}, v{t1}, v{r1}"]
            n = len(L); k = t - CF; nn = CE - CF
            fill = merge(fill, spread(L[k * n // nn:(k + 1) * n // nn], 20, start=1))
        weave(P, mf, fill)
        if t == 1:
            E(f"s_cmp_lg_u32 s{sQ}, 3"); E(f"s_cbranch_scc1 L_p3_nz{g}")
            P.raw("  s_nop 7")
            for i in range(40): P.raw(f"  v_mov_b32 v{R.ACCF+i}, 0")
            P.raw("  s_nop 1")
            P.label(f"L_p3_nz{g}")
    P.stamp()
    cv = p3_cvt(R.ACCS)
    for i in range(5):
        for x in cv[4 * i:4 * i + 4]: E(x)
        E(p3_store(R.ACCS, 1, i))
    p3_gather(P, R.ACCS, 1)
    p3_check(P, R, g, R.ACCS, 1, slow)
    P.stamp()
    for x in p3_combine(R, R.ACCS): E(x)
    for i in range(5):
        a, b = RES[2 * i], RES[2 * i + 1]
        E(f"v_lshlrev_b32 v{R.T}, 16, v{R.XS+i}"); E(f"v_and_b32 v{R.T+1}, s{sMASK}, v{R.XS+i}")
        E(f"v_fmac_f32 v{R.T}, v{R.ACCS+a}, v{R.ACCF+a}"); E(f"v_fmac_f32 v{R.T+1}, v{R.ACCS+b}, v{R.ACCF+b}")
        E(f"v_cvt_pk_bf16_f32 v{R.XS+i}, v{R.T}, v{R.T+1}")
    E(f"buffer_store_dword v{R.XS+4}, v{R.VO+1}, {sr(sOUT)}, 0 offen offset:256")
    p3_xswap(P, R)
    E(f"buffer_store_dwordx4 {vr(R.XS,4)}, v{R.VO}, {sr(sOUT)}, 0 offen offset:{128*g}")
```
